```python
import torch

def _softmax(x, axis=-1):
    return torch.softmax(x, dim=axis)
def _gelu(x):
    return torch.nn.functional.gelu(x, approximate="tanh")
def _silu(x):
    return torch.nn.functional.silu(x)
def _sigmoid(x):
    return torch.sigmoid(x)
def _layernorm(x, axis=-1, eps=1e-5):
    m = x.mean(dim=axis, keepdim=True)
    v = x.var(dim=axis, keepdim=True, unbiased=False)
    return (x - m) / torch.sqrt(v + eps)
def _scatter_add(tgt, idx, src, axis=0):
    return tgt.clone().index_add_(axis, idx, src)
def _segment_sum(src, seg, n):
    out = torch.zeros((n,) + src.shape[1:], dtype=src.dtype)
    return out.index_add_(0, seg, src)
def _pad(x, pw):
    flat = tuple(v for pair in reversed(pw) for v in pair)
    return torch.nn.functional.pad(x, flat)

kernel_name = 'sequential_preLN__ssm_conv_s4d__dense_activation_gelu__prompt'

def setup_inputs():

    _w = (lambda a: (lambda t: t.to(torch.bfloat16) if t.is_floating_point() else t)(torch.as_tensor(a)))
    def _A_setup():
        Bsz, L, D, N = 1, 2048, 512, 128
        return {
            "u": _w((lambda *s: torch.randn(*s, dtype=torch.bfloat16) * 0.05)(Bsz, L, D)),
            "log_A_real": _w((lambda *s: torch.randn(*s, dtype=torch.bfloat16) * 6.4)(D, N) * 0.5),
            "A_imag": _w((lambda *s: torch.randn(*s, dtype=torch.bfloat16) * 0.05)(D, N) * 3.14),
            "C_real": _w((lambda *s: torch.randn(*s, dtype=torch.bfloat16) * 0.05)(D, N) / N ** 0.5),
            "C_imag": _w((lambda *s: torch.randn(*s, dtype=torch.bfloat16) * 0.05)(D, N) / N ** 0.5),
            "log_dt": _w((lambda *s: torch.randn(*s, dtype=torch.bfloat16) * 0.05)(D) * 0.5 - 4.0),
            "D_skip": _w((lambda *s: torch.randn(*s, dtype=torch.bfloat16) * 0.05)(D)),
        }
    _A_in = _A_setup()

    def _B_setup():
        B, S, D, F = 1, 2048, 512, 1792
        return {
            "x": _w((lambda *s: torch.randn(*s, dtype=torch.bfloat16) * 0.05)(B, S, D)),
            "w1": _w((lambda *s: torch.randn(*s, dtype=torch.bfloat16) * 0.8)(D, F) * (D ** -0.5)),
            "b1": _w((lambda *s: torch.randn(*s, dtype=torch.bfloat16) * 12.8)(F) * 0.01),
            "w2": _w((lambda *s: torch.randn(*s, dtype=torch.bfloat16) * 0.4)(F, D) * (F ** -0.5)),
            "b2": _w((lambda *s: torch.randn(*s, dtype=torch.bfloat16) * 6.4)(D) * 0.01),
        }
    _B_in = _B_setup()

    return {
        "A_u": _A_in["u"],
        "A_log_A_real": _A_in["log_A_real"],
        "A_A_imag": _A_in["A_imag"],
        "A_C_real": _A_in["C_real"],
        "A_C_imag": _A_in["C_imag"],
        "A_log_dt": _A_in["log_dt"],
        "A_D_skip": _A_in["D_skip"],
        "B_x": _B_in["x"],
        "B_w1": _B_in["w1"],
        "B_b1": _B_in["b1"],
        "B_w2": _B_in["w2"],
        "B_b2": _B_in["b2"],
    }

def reference(A_u, A_log_A_real, A_A_imag, A_C_real, A_C_imag, A_log_dt, A_D_skip, B_x, B_w1, B_b1, B_w2, B_b2):
    def _A_ref(u, log_A_real, A_imag, C_real, C_imag, log_dt, D_skip):
        L = u.shape[1]
        dt = torch.exp(log_dt)
        A = -torch.exp(log_A_real) + 1j * A_imag
        C = (C_real + 1j * C_imag) * dt[:, None]
        pos = (lambda x, dt: x.to(dt))(torch.arange(L), log_dt.dtype)
        P = torch.exp((A * dt[:, None])[:, :, None] * pos[None, None, :])
        K = 2.0 * torch.einsum("dn,dnl->dl", C, P).real
        L2 = 2 * L
        u_t = (lambda x, *d: x.permute(*d))(u, 0, 2, 1)
        Kf = (lambda x, *a, **k: torch.fft.rfft(x.float(), *a, **k))(K, L2)
        Uf = (lambda x, *a, **k: torch.fft.rfft(x.float(), *a, **k))(u_t, L2)
        y = (lambda x, *a, **k: torch.fft.irfft(x, *a, **k).to(torch.bfloat16))(Uf * Kf[None, :, :], L2)[:, :, :L]
        y = (lambda x, *d: x.permute(*d))(y, 0, 2, 1)
        return y + u * D_skip[None, None, :]

    def _B_ref(x, w1, b1, w2, b2):
        h = torch.einsum("bsd,df->bsf", x, w1) + b1
        h = _gelu(h)
        return torch.einsum("bsf,fd->bsd", h, w2) + b2

    x = A_u
    h = x + _A_ref(_layernorm(x, axis=-1), A_log_A_real, A_A_imag, A_C_real, A_C_imag, A_log_dt, A_D_skip)
    h2 = h + _B_ref(_layernorm(h, axis=-1), B_w1, B_b1, B_w2, B_b2)
    return h2
```

```python
class Asm:
    def __init__(self):
        self.lines = []
        self.uid = 0
    def __call__(self, s=''):
        for l in s.split('\n'):
            l = l.rstrip()
            if l.endswith(':') and not l.startswith(' '):
                self.lines.append(l)
            else:
                self.lines.append('    ' + l.strip() if l.strip() else '')
    def label(self, name):
        self.lines.append(name + ':')
    def newlabel(self, base):
        self.uid += 1
        return f'L{base}_{self.uid}'
    def comment(self, s):
        self.lines.append('    ; ' + s)
    def text(self):
        return '\n'.join(self.lines) + '\n'

def v(i, n=1):
    return f'v{i}' if n == 1 else f'v[{i}:{i+n-1}]'
def s(i, n=1):
    return f's{i}' if n == 1 else f's[{i}:{i+n-1}]'
def a(i, n=1):
    return f'a{i}' if n == 1 else f'a[{i}:{i+n-1}]'

def kernel_header(A, name):
    A.lines.append(f'.globl {name}')
    A.lines.append('.p2align 8')
    A.lines.append(f'.type {name},@function')
    A.lines.append(f'{name}:')

def kernel_desc(name, vgpr, accum, sgpr=102):
    return f'''.amdhsa_kernel {name}
  .amdhsa_next_free_vgpr {vgpr}
  .amdhsa_next_free_sgpr {sgpr}
  .amdhsa_accum_offset {accum}
  .amdhsa_group_segment_fixed_size 0
  .amdhsa_kernarg_size 120
  .amdhsa_user_sgpr_count 2
  .amdhsa_user_sgpr_kernarg_segment_ptr 1
  .amdhsa_system_sgpr_workgroup_id_x 1
  .amdhsa_float_denorm_mode_32 3
.end_amdhsa_kernel
'''

KA_U, KA_LOGA, KA_AIM, KA_CRE, KA_CIM, KA_LOGDT, KA_DSKIP, KA_BX, KA_W1, KA_B1, KA_W2, KA_B2, KA_OUT, KA_DBG, KA_WS = [8*i for i in range(15)]

WS_XU  = 0x0000000
WS_KC  = 0x0400000
KC_COPY = 4224
KC_CH = 2*KC_COPY
WS_H   = 0x0900000
WS_W1F = 0x0B00000
WS_W2F = 0x0D00000
WS_HID = 0x1000000
WS_CS  = 0x0F00000
WS_END = 0x1800000

LOG2E = 0x3fb8aa3b
INV2PI = 0x3e22f983
```

```python
from core import *

def cmul(A, dst, P, Q, conj_neg=False):
    A(f'v_pk_mul_f32 {v(dst,2)}, {v(P,2)}, {v(Q,2)} op_sel:[0,0] op_sel_hi:[1,0]')
    A(f'v_pk_fma_f32 {v(dst,2)}, {v(P,2)}, {v(Q,2)}, {v(dst,2)} op_sel:[1,1,0] op_sel_hi:[0,1,1] neg_lo:[1,0,0]')

def cexp(A, dst, p_lit, a2, arev, t0, t1):
    if p_lit is None:
        A(f'v_exp_f32 {v(t0)}, {v(a2)}')
        A(f'v_fract_f32 {v(t1)}, {v(arev)}')
    else:
        A(f'v_mul_f32 {v(t0)}, {p_lit}, {v(a2)}')
        A(f'v_mul_f32 {v(t1)}, {p_lit}, {v(arev)}')
        A(f'v_exp_f32 {v(t0)}, {v(t0)}')
        A(f'v_fract_f32 {v(t1)}, {v(t1)}')
    A(f'v_cos_f32 {v(dst)}, {v(t1)}')
    A(f'v_sin_f32 {v(dst+1)}, {v(t1)}')
    A('s_nop 0')
    A(f'v_mul_f32 {v(dst)}, {v(dst)}, {v(t0)}')
    A(f'v_mul_f32 {v(dst+1)}, {v(dst+1)}, {v(t0)}')

WREG = 17408
SY = 8704
ROW = 272

def kgen_role(A):
    A.comment('==== K-gen role: wg < 256 ====')
    A(f's_load_dwordx8 s[4:11], s[0:1], {KA_LOGA}')
    A(f's_load_dwordx2 s[12:13], s[0:1], {KA_LOGDT}')
    A(f's_load_dwordx2 s[14:15], s[0:1], {KA_WS}')
    A('s_and_b32 s16, s2, 7')
    A('s_lshl_b32 s16, s16, 5')
    A('s_lshr_b32 s17, s2, 3')
    A('s_add_u32 s16, s16, s17')
    A('v_lshrrev_b32 v1, 6, v0')
    A('v_and_b32 v2, 63, v0')
    A('v_readfirstlane_b32 s18, v1')
    A('v_lshlrev_b32 v3, 1, v0')
    A('s_lshl_b32 s19, s16, 9')
    A('v_add_u32 v3, s19, v3')
    A('v_lshrrev_b32 v4, 7, v0')
    A('v_lshlrev_b32 v4, 1, v4')
    A('s_lshl_b32 s20, s16, 2')
    A('v_add_u32 v4, s20, v4')
    A('s_waitcnt lgkmcnt(0)')
    A('global_load_ushort v14, v4, s[12:13]')
    A('global_load_ushort v10, v3, s[4:5]')
    A('global_load_ushort v11, v3, s[6:7]')
    A('global_load_ushort v12, v3, s[8:9]')
    A('global_load_ushort v13, v3, s[10:11]')
    A(f's_mul_i32 s21, s18, {WREG}')
    A('v_lshlrev_b32 v5, 2, v2')
    A('v_add_u32 v5, s21, v5')
    A('v_and_b32 v6, 31, v2')
    A('v_lshrrev_b32 v7, 5, v2')
    A(f'v_mul_u32_u24 v8, {ROW}, v6')
    A('v_lshlrev_b32 v9, 4, v7')
    A('v_add3_u32 v8, v8, v9, s21')
    A('s_waitcnt vmcnt(4)')
    A('v_lshlrev_b32 v14, 16, v14')
    A(f'v_mul_f32 v14, {LOG2E:#x}, v14')
    A('v_exp_f32 v14, v14')
    A('s_waitcnt vmcnt(3)')
    A('v_lshlrev_b32 v10, 16, v10')
    A(f'v_mul_f32 v10, {LOG2E:#x}, v10')
    A('v_exp_f32 v10, v10')
    A('v_cvt_pk_bf16_f32 v14, v14, v14')
    A('v_lshlrev_b32 v14, 16, v14')
    A('v_cvt_pk_bf16_f32 v10, v10, v10')
    A('v_lshlrev_b32 v10, 16, v10')
    A('v_mul_f32 v10, v10, v14')
    A(f'v_mul_f32 v10, {LOG2E | 0x80000000:#x}, v10')
    A('s_waitcnt vmcnt(0)')
    A('v_lshlrev_b32 v11, 16, v11')
    A('v_lshlrev_b32 v12, 16, v12')
    A('v_lshlrev_b32 v13, 16, v13')
    A('v_mul_f32 v11, v11, v14')
    A(f'v_mul_f32 v11, {INV2PI:#x}, v11')
    A('v_add_f32 v14, v14, v14')
    a2, arev = 10, 11
    V = [16+2*i for i in range(9)]
    A(f'v_mul_f32 v16, v12, v14')
    A(f'v_mul_f32 v17, v13, v14')
    Z, W, E1 = 34, 36, 38
    cexp(A, W, '0x41000000', a2, arev, 12, 13)
    cexp(A, Z, None, a2, arev, 12, 13)
    cexp(A, E1, '0x43800000', a2, arev, 12, 13)
    E = {1: E1, 2: 40, 3: 42, 4: 44, 5: 46, 6: 48, 7: 50}
    XA, XB = 52, 54
    T = [56, 58, 60, 62]
    C = [64, 65, 66, 67, 68, 69, 70, 71]
    ci = [0]
    def nextc():
        r = C[ci[0] % len(C)]; ci[0] += 1; return r
    ti = [0]
    def nextt():
        r = T[ti[0] % len(T)]; ti[0] += 1; return r
    def emitX(pos, reg):
        c = nextc()
        return [f'v_cvt_pk_bf16_f32 {v(c)}, {v(reg)}, {v(reg+1)}',
                f'ds_write_b32 v5, {v(c)} offset:{pos*ROW}']
    def emitY(rows, reg):
        c = nextc()
        o = [f'v_cvt_pk_bf16_f32 {v(c)}, {v(reg)}, -{v(reg+1)}']
        for r in rows:
            o.append(f'ds_write_b32 v5, {v(c)} offset:{SY + r*ROW}')
        return o
    def cm(dst, P, Q):
        return [f'v_pk_mul_f32 {v(dst,2)}, {v(P,2)}, {v(Q,2)} op_sel:[0,0] op_sel_hi:[1,0]',
                f'v_pk_fma_f32 {v(dst,2)}, {v(P,2)}, {v(Q,2)}, {v(dst,2)} op_sel:[1,1,0] op_sel_hi:[0,1,1] neg_lo:[1,0,0]']
    xs = []
    xs.append([f'v_mov_b32 {v(72)}, 0x3f80', f'ds_write_b32 v5, {v(72)} offset:0'])
    xs.append(emitX(1, W))
    cur = W
    for jx in range(2, 32):
        dst = XA if jx % 2 == 0 else XB
        xs.append(cm(dst, cur, W) + emitX(jx, dst))
        cur = dst
    ys = []
    ys.append(emitY([0], V[0]))
    for h in range(1, 9):
        o = cm(V[h], V[h-1], Z)
        if h < 8: o += emitY([h], V[h])
        ys.append(o)
    ys.append(cm(E[2], E[1], E[1]))
    ys.append(cm(E[3], E[2], E[1]))
    ys.append(cm(E[4], E[2], E[2]))
    ys.append(cm(E[5], E[4], E[1]))
    ys.append(cm(E[6], E[4], E[2]))
    ys.append(cm(E[7], E[4], E[3]))
    def prod(e, h, rows):
        t = nextt()
        return cm(t, E[e], V[h]) + emitY(rows, t)
    ys.append(prod(1, 0, [8]));  ys.append(prod(1, 2, [9])); ys.append(prod(1, 4, [10, 12]))
    ys.append(prod(1, 6, [13])); ys.append(prod(1, 8, [14]))
    ys.append(prod(2, 0, [16])); ys.append(prod(2, 4, [17, 20])); ys.append(prod(2, 8, [21]))
    ys.append(prod(3, 0, [18])); ys.append(prod(3, 4, [19, 22])); ys.append(prod(3, 8, [23]))
    for i, e in enumerate((4, 5, 6, 7)):
        ys.append(prod(e, 0, [24 + 2*i])); ys.append(prod(e, 8, [25 + 2*i]))
    while xs or ys:
        if xs:
            for l in xs.pop(0): A(l)
        if ys:
            for l in ys.pop(0): A(l)
    for i in range(16): A(f'v_mov_b32 {v(144+i)}, 0')
    for sidx in range(8):
        A(f'ds_read_b128 {v(80+8*sidx,4)}, v8 offset:{SY+32*sidx}')
        A(f'ds_read_b128 {v(84+8*sidx,4)}, v8 offset:{32*sidx}')
    for sidx in range(8):
        A(f's_waitcnt lgkmcnt({min(15, 14-2*sidx)})')
        A(f'v_mfma_f32_32x32x16_bf16 {v(144,16)}, {v(80+8*sidx,4)}, {v(84+8*sidx,4)}, {v(144,16)}')
    A('v_lshlrev_b32 v9, 4, v2')
    A('v_add_u32 v15, s21, v9')
    A('s_xor_b32 s22, s18, 1')
    A(f's_mul_i32 s22, s22, {WREG}')
    A('v_add_u32 v9, s22, v9')
    A('s_lshr_b32 s23, s18, 1')
    A(f's_mul_i32 s23, s23, {2*WREG}')
    A('s_add_u32 s23, s23, 4096')
    A('v_lshlrev_b32 v12, 4, v6')
    A('v_lshlrev_b32 v13, 3, v7')
    A('v_add_u32 v13, v12, v13')
    A('s_add_u32 s24, s23, 504')
    A('v_sub_u32 v13, s24, v13')
    A('s_and_b32 s25, s18, 1')
    A('s_cmp_eq_u32 s25, 0')
    lab1 = A.newlabel('kg_mh1'); labj = A.newlabel('kg_join')
    A(f's_cbranch_scc0 {lab1}')
    A('s_nop 7')
    A(f'ds_write_b128 v15, {v(152,4)}')
    A(f'ds_write_b128 v15, {v(156,4)} offset:1024')
    A('s_waitcnt lgkmcnt(0)')
    A('s_barrier')
    A(f'ds_read_b128 {v(80,4)}, v9')
    A(f'ds_read_b128 {v(84,4)}, v9 offset:1024')
    A('v_mov_b32 v64, 0\nv_mov_b32 v65, 0\nv_mov_b32 v66, 0\nv_mov_b32 v67, 0')
    A('v_mov_b32 v68, s23')
    A('ds_write_b128 v68, v[64:67] offset:4096')
    A('s_waitcnt lgkmcnt(1)')
    for i in range(8): A(f'v_add_f32 {v(144+i)}, {v(144+i)}, {v(80+i)}')
    A('v_cvt_pk_bf16_f32 v70, v147, v146')
    A('v_cvt_pk_bf16_f32 v71, v145, v144')
    A('v_cvt_pk_bf16_f32 v72, v150, v149')
    A('v_cvt_pk_bf16_f32 v73, v148, v148')
    A(f'ds_write_b64 v13, v[70:71] offset:{3584}')
    A(f'ds_write_b64 v13, v[72:73] offset:{3584-512}')
    A(f's_branch {labj}')
    A.label(lab1)
    A('s_nop 7')
    A(f'ds_write_b128 v15, {v(144,4)}')
    A(f'ds_write_b128 v15, {v(148,4)} offset:1024')
    A('s_waitcnt lgkmcnt(0)')
    A('s_barrier')
    A(f'ds_read_b128 {v(80,4)}, v9')
    A(f'ds_read_b128 {v(84,4)}, v9 offset:1024')
    A('v_lshlrev_b32 v64, 10, v7')
    A('v_add_u32 v64, v64, v12')
    A('s_add_u32 s24, s23, 1520')
    A('v_sub_u32 v64, s24, v64')
    A('v_cmp_eq_u32 s[26:27], 1, v7')
    A('v_and_b32 v65, 1, v6')
    A('v_cmp_eq_u32 s[28:29], 1, v65')
    A('s_waitcnt lgkmcnt(0)')
    for i in range(8): A(f'v_add_f32 {v(152+i)}, {v(152+i)}, {v(80+i)}')
    for i in range(2):
        p, sv = 152+2*i, 153+2*i
        A(f'v_cndmask_b32 v66, {v(p)}, {v(sv)}, s[26:27]')
        A(f'v_cvt_pk_bf16_f32 {v(70+2*i)}, {v(sv)}, v66')
        A(f'v_cvt_pk_bf16_f32 {v(71+2*i)}, {v(p)}, {v(p)}')
        A(f'ds_write_b64 v13, {v(70+2*i,2)} offset:{3584-2*(512+256*i)}')
    for i in range(2):
        p, sv = 156+2*i, 157+2*i
        r = 80+4*i
        A(f'v_cndmask_b32 v66, {v(p)}, {v(sv)}, s[28:29]')
        A(f'v_cvt_pk_bf16_f32 {v(r)}, {v(sv)}, {v(sv)}')
        A(f'v_cvt_pk_bf16_f32 {v(r+1)}, {v(sv)}, v66')
        A(f'v_cvt_pk_bf16_f32 {v(r+2)}, {v(p)}, {v(p)}')
        A(f'v_cvt_pk_bf16_f32 {v(r+3)}, {v(p)}, {v(p)}')
        A(f'ds_write_b128 v64, {v(r,4)} offset:{512 if i==0 else 0}')
    A.label(labj)
    A('s_waitcnt lgkmcnt(0)')
    A('s_barrier')
    A('v_lshrrev_b32 v1, 7, v0')
    A('v_and_b32 v3, 127, v0')
    A('v_lshlrev_b32 v3, 4, v3')
    A(f'v_mul_u32_u24 v4, {2*WREG}, v1')
    A('v_add3_u32 v4, v4, v3, 0')
    A('v_add_u32 v4, 4096, v4')
    A(f'ds_read_b128 v[16:19], v4')
    A(f'ds_read_b32 v20, v4 offset:16')
    A(f'ds_read_b128 v[24:27], v4 offset:2048')
    A(f'ds_read_b32 v28, v4 offset:2064')
    A('s_lshl_b32 s24, s16, 1')
    A('v_add_u32 v5, s24, v1')
    A(f'v_mul_u32_u24 v5, {KC_CH}, v5')
    A('v_add_u32 v5, v5, v3')
    A(f's_add_u32 s14, s14, {WS_KC}')
    A('s_addc_u32 s15, s15, 0')
    A(f'v_add_u32 v6, {KC_COPY}, v5')
    A('s_waitcnt lgkmcnt(2)')
    for k in range(4): A(f'v_alignbit_b32 {v(32+k)}, {v(17+k)}, {v(16+k)}, 16')
    A('global_store_dwordx4 v5, v[16:19], s[14:15]')
    A('global_store_dwordx4 v6, v[32:35], s[14:15]')
    A('s_waitcnt lgkmcnt(0)')
    for k in range(4): A(f'v_alignbit_b32 {v(36+k)}, {v(25+k)}, {v(24+k)}, 16')
    A('global_store_dwordx4 v5, v[24:27], s[14:15] offset:2048')
    A('global_store_dwordx4 v6, v[36:39], s[14:15] offset:2048')
    A('v_mov_b32 v40, 0\nv_mov_b32 v41, 0\nv_mov_b32 v42, 0\nv_mov_b32 v43, 0')
    A('v_add_u32 v5, 4096, v5')
    A('v_add_u32 v6, 4096, v6')
    A('v_cmp_eq_u32 vcc, 0, v3')
    A('s_and_saveexec_b64 s[26:27], vcc')
    lab = A.newlabel('kg_nz')
    A(f's_cbranch_execz {lab}')
    A('global_store_dwordx4 v5, v[40:43], s[14:15]')
    A('global_store_dwordx4 v6, v[40:43], s[14:15]')
    A.label(lab)
    A('s_endpgm')

def ln1_role(A):
    A.comment('==== LN1 + weight relayout role: 256 <= wg < 512 ====')
    A(f's_load_dwordx2 s[4:5], s[0:1], {KA_U}')
    A(f's_load_dwordx2 s[6:7], s[0:1], {KA_W1}')
    A(f's_load_dwordx2 s[8:9], s[0:1], {KA_W2}')
    A(f's_load_dwordx2 s[14:15], s[0:1], {KA_WS}')
    A('s_sub_u32 s16, s2, 256')
    A('s_and_b32 s17, s16, 7')
    A('s_lshl_b32 s17, s17, 5')
    A('s_lshr_b32 s18, s16, 3')
    A('s_add_u32 s17, s17, s18')
    A('v_lshrrev_b32 v1, 6, v0')
    A('v_and_b32 v2, 63, v0')
    A('v_readfirstlane_b32 s19, v1')
    A('s_lshl_b32 s20, s17, 13')
    A('v_lshlrev_b32 v3, 2, v0')
    A('v_add_u32 v3, s20, v3')
    A('v_add_u32 v4, 4096, v3')
    A('v_lshlrev_b32 v5, 11, v1')
    A('v_lshlrev_b32 v6, 4, v2')
    A('v_add3_u32 v5, v5, v6, s20')
    A('s_waitcnt lgkmcnt(0)')
    A('global_load_dwordx4 v[8:11], v5, s[4:5]')
    A('global_load_dwordx4 v[12:15], v5, s[4:5] offset:1024')
    for r in range(8):
        base = 3 if r < 4 else 4
        A(f'global_load_dword {v(16+r)}, {v(base)}, s[4:5] offset:{(r%4)*1024}')
    labw1 = A.newlabel('w1'); labw2 = A.newlabel('w2'); labwn = A.newlabel('wnone')
    A('s_mov_b32 s30, 0')
    A('s_cmp_eq_u32 s19, 0')
    A(f's_cbranch_scc1 {labw1}')
    A('s_cmp_eq_u32 s19, 1')
    A(f's_cbranch_scc0 {labwn}')
    A('s_cmp_lt_u32 s16, 224')
    A(f's_cbranch_scc0 {labwn}')
    A('s_mov_b32 s30, 2')
    A('s_lshr_b32 s21, s16, 2')
    A('s_and_b32 s22, s16, 3')
    A('s_lshl_b32 s23, s21, 5')
    A('s_lshl_b32 s24, s22, 2')
    A('s_add_u32 s23, s23, s24')
    A('s_lshl_b32 s23, s23, 10')
    A('v_lshlrev_b32 v6, 4, v2')
    A('v_add_u32 v6, s23, v6')
    A('v_add_u32 v7, 16384, v6')
    for e in range(4):
        A(f'global_load_dwordx4 {v(32+4*e,4)}, v6, s[8:9] offset:{e*1024}')
    for e in range(4):
        A(f'global_load_dwordx4 {v(48+4*e,4)}, v7, s[8:9] offset:{e*1024}')
    A('v_lshrrev_b32 v24, 1, v2')
    A(f'v_mul_u32_u24 v24, {56*1024}, v24')
    A('v_and_b32 v25, 1, v2')
    A('v_lshlrev_b32 v25, 7, v25')
    A('s_lshl_b32 s23, s21, 10')
    A('s_lshl_b32 s24, s22, 8')
    A('s_add_u32 s23, s23, s24')
    A(f's_add_u32 s23, s23, {WS_W2F}')
    A('v_add3_u32 v24, v24, v25, s23')
    A(f's_branch {labwn}')
    A.label(labw1)
    A('s_lshr_b32 s21, s16, 3')
    A('s_cmp_lt_u32 s21, 28')
    A(f's_cbranch_scc0 {labwn}')
    A('s_mov_b32 s30, 1')
    A('s_and_b32 s22, s16, 7')
    A('s_mul_i32 s22, s22, 28')
    A('s_add_u32 s22, s22, s21')
    A('s_lshl_b32 s23, s22, 4')
    A(f'v_mul_u32_u24 v6, {8*3584}, v2')
    A('v_add_u32 v6, s23, v6')
    for e in range(8):
        A(f'global_load_dwordx4 {v(32+4*e,4)}, v6, s[6:7]')
        if e < 7: A('v_add_u32 v6, 3584, v6')
    A('s_lshr_b32 s23, s22, 1')
    A('s_lshl_b32 s23, s23, 14')
    A('s_and_b32 s24, s22, 1')
    A('s_lshl_b32 s24, s24, 7')
    A('s_add_u32 s23, s23, s24')
    A(f's_add_u32 s23, s23, {WS_W1F}')
    A('v_lshlrev_b32 v24, 8, v2')
    A('v_add_u32 v24, s23, v24')
    A('s_lshl_b32 s33, s22, 5')
    A(f's_add_u32 s33, s33, {WS_CS}')
    A.label(labwn)
    A('s_cmp_eq_u32 s30, 0')
    labs0 = A.newlabel('s0'); labs1 = A.newlabel('s1')
    A(f's_cbranch_scc1 {labs0}')
    A('s_waitcnt vmcnt(16)')
    A(f's_branch {labs1}')
    A.label(labs0)
    A('s_waitcnt vmcnt(8)')
    A.label(labs1)
    A('s_mov_b32 s31, 0x3f803f80')
    for i in range(4): A(f'v_mov_b32 {v(64+i)}, 0')
    for k in range(4):
        A(f'v_dot2c_f32_bf16 v64, s31, {v(8+k)}')
        A(f'v_dot2c_f32_bf16 v65, {v(8+k)}, {v(8+k)}')
        A(f'v_dot2c_f32_bf16 v66, s31, {v(12+k)}')
        A(f'v_dot2c_f32_bf16 v67, {v(12+k)}, {v(12+k)}')
    A('s_nop 1')
    for ctl in ('row_ror:8', 'row_ror:4', 'row_ror:2', 'row_ror:1'):
        for i in range(4):
            A(f'v_add_f32_dpp {v(64+i)}, {v(64+i)}, {v(64+i)} {ctl} row_mask:0xf bank_mask:0xf')
    for ctl, m in (('row_bcast:15', '0xa'), ('row_bcast:31', '0xc')):
        for i in range(4):
            A(f'v_add_f32_dpp {v(64+i)}, {v(64+i)}, {v(64+i)} {ctl} row_mask:{m} bank_mask:0xf')
    inv512 = '0x3b000000'
    for (sm, sq, om, orr) in ((64, 65, 68, 69), (66, 67, 70, 71)):
        A(f'v_mul_f32 {v(sm)}, {inv512}, {v(sm)}')
        A(f'v_mul_f32 {v(sq)}, {inv512}, {v(sq)}')
        A(f'v_fma_f32 {v(sq)}, -{v(sm)}, {v(sm)}, {v(sq)}')
        A(f'v_max_f32 {v(sq)}, 0, {v(sq)}')
        A(f'v_cvt_pk_bf16_f32 {v(om)}, {v(sm)}, {v(sq)}')
        A(f'v_and_b32 {v(orr)}, 0xffff0000, {v(om)}')
        A(f'v_lshlrev_b32 {v(om)}, 16, {v(om)}')
        A(f'v_add_f32 {v(orr)}, 0x3727c5ac, {v(orr)}')
        A(f'v_cvt_pk_bf16_f32 {v(orr)}, {v(orr)}, {v(orr)}')
        A(f'v_lshlrev_b32 {v(orr)}, 16, {v(orr)}')
        A(f'v_sqrt_f32 {v(orr)}, {v(orr)}')
        A('s_nop 0')
        A(f'v_cvt_pk_bf16_f32 {v(orr)}, {v(orr)}, {v(orr)}')
        A(f'v_lshlrev_b32 {v(orr)}, 16, {v(orr)}')
        A(f'v_rcp_f32 {v(orr)}, {v(orr)}')
    A('v_lshlrev_b32 v72, 4, v1')
    A('v_cmp_eq_u32 vcc, 63, v2')
    A('s_and_saveexec_b64 s[28:29], vcc')
    A('ds_write_b128 v72, v[68:71]')
    A('s_mov_b64 exec, s[28:29]')
    labt = A.newlabel('wt')
    A('s_cmp_eq_u32 s30, 0')
    A(f's_cbranch_scc1 {labt}')
    A('s_waitcnt vmcnt(0)')
    A('s_mov_b32 s21, 0x05040100')
    A('s_mov_b32 s22, 0x07060302')
    for i in range(8): A(f'v_mov_b32 {v(144+i)}, 0')
    for c in range(8):
        p = c >> 1
        sel = 's21' if (c & 1) == 0 else 's22'
        o = 96 + 4*(c % 4)
        for m in range(4):
            A(f'v_perm_b32 {v(o+m)}, {v(32+4*(2*m+1)+p)}, {v(32+4*(2*m)+p)}, {sel}')
        A(f'global_store_dwordx4 v24, {v(o,4)}, s[14:15] offset:{16*c}')
        for m in range(4):
            A(f'v_dot2c_f32_bf16 {v(144+c)}, s31, {v(o+m)}')
    A('s_cmp_eq_u32 s30, 1')
    A(f's_cbranch_scc0 {labt}')
    A('s_nop 2')
    for ctl in ('row_ror:8', 'row_ror:4', 'row_ror:2', 'row_ror:1'):
        for i in range(8):
            A(f'v_add_f32_dpp {v(144+i)}, {v(144+i)}, {v(144+i)} {ctl} row_mask:0xf bank_mask:0xf')
    for ctl, m in (('row_bcast:15', '0xa'), ('row_bcast:31', '0xc')):
        for i in range(8):
            A(f'v_add_f32_dpp {v(144+i)}, {v(144+i)}, {v(144+i)} {ctl} row_mask:{m} bank_mask:0xf')
    A('v_mov_b32 v152, s33')
    A('v_cmp_eq_u32 vcc, 63, v2')
    A('s_and_saveexec_b64 s[28:29], vcc')
    A('global_store_dwordx4 v152, v[144:147], s[14:15]')
    A('global_store_dwordx4 v152, v[148:151], s[14:15] offset:16')
    A('s_mov_b64 exec, s[28:29]')
    A.label(labt)
    A('s_waitcnt lgkmcnt(0)')
    A('s_barrier')
    A('v_mov_b32 v72, 0')
    for i in range(4): A(f'ds_read_b128 {v(76+4*i,4)}, v72 offset:{16*i}')
    A('s_waitcnt vmcnt(0)')
    A('s_mov_b32 s21, 0xffff0000')
    for r in range(8):
        A(f'v_lshlrev_b32 {v(112+2*r)}, 16, {v(16+r)}')
        A(f'v_and_b32 {v(113+2*r)}, s21, {v(16+r)}')
    A('s_waitcnt lgkmcnt(0)')
    for r in range(8):
        A(f'v_pk_add_f32 {v(112+2*r,2)}, {v(112+2*r,2)}, {v(76+2*r,2)} op_sel_hi:[1,0] neg_lo:[0,1] neg_hi:[0,1]')
    for r in range(8):
        A(f'v_cvt_pk_bf16_f32 {v(128+r)}, {v(112+2*r)}, {v(113+2*r)}')
    for r in range(8):
        A(f'v_lshlrev_b32 {v(112+2*r)}, 16, {v(128+r)}')
        A(f'v_and_b32 {v(113+2*r)}, s21, {v(128+r)}')
    for r in range(8):
        A(f'v_pk_mul_f32 {v(112+2*r,2)}, {v(112+2*r,2)}, {v(76+2*r,2)} op_sel:[0,1] op_sel_hi:[1,1]')
    for m in range(4):
        A(f'v_cvt_pk_bf16_f32 {v(136+m)}, {v(112+4*m)}, {v(114+4*m)}')
        A(f'v_cvt_pk_bf16_f32 {v(140+m)}, {v(113+4*m)}, {v(115+4*m)}')
    A('v_lshlrev_b32 v3, 14, v0')
    A('s_lshl_b32 s20, s17, 6')
    A(f's_add_u32 s20, s20, {WS_XU}')
    A('v_add_u32 v3, s20, v3')
    A('global_store_dwordx4 v3, v[16:19], s[14:15]')
    A('global_store_dwordx4 v3, v[20:23], s[14:15] offset:16')
    A('global_store_dwordx4 v3, v[136:139], s[14:15] offset:32')
    A('global_store_dwordx4 v3, v[140:143], s[14:15] offset:48')
    A('s_endpgm')

def k1(A, name):
    kernel_header(A, name)
    A('s_cmp_ge_u32 s2, 512')
    lex = A.newlabel('k1_exit'); lln = A.newlabel('k1_ln')
    A(f's_cbranch_scc1 {lex}')
    A('s_cmp_ge_u32 s2, 256')
    A(f's_cbranch_scc1 {lln}')
    kgen_role(A)
    A.label(lln)
    ln1_role(A)
    A.label(lex)
    A('s_endpgm')
    return dict(vgpr=160, accum=160, lds=4*WREG, grid=512, block=256)
```

```python
from core import *

KL_COPY = 4160
KL_CH = 4*KL_COPY
UT = 2*KL_CH
UT_CH = 6144
UT_Q = 1536
PB = UT + 2*UT_CH
P_REG = 9216
P_ROW = 144
K2_LDS = PB + 4*P_REG

def k2(A, name):
    kernel_header(A, name)
    lex = A.newlabel('k2_exit')
    A('s_cmp_ge_u32 s2, 256')
    A(f's_cbranch_scc1 {lex}')
    A(f's_load_dwordx2 s[4:5], s[0:1], {KA_WS}')
    A(f's_load_dwordx2 s[6:7], s[0:1], {KA_DSKIP}')
    A('s_and_b32 s16, s2, 7')
    A('s_lshl_b32 s16, s16, 5')
    A('s_lshr_b32 s17, s2, 3')
    A('s_add_u32 s16, s16, s17')
    A('v_lshrrev_b32 v1, 6, v0')
    A('v_and_b32 v2, 63, v0')
    A('v_readfirstlane_b32 s18, v1')
    A('s_lshr_b32 s19, s18, 1')
    A('s_and_b32 s20, s18, 1')
    A('v_lshlrev_b32 v3, 4, v2')
    A('s_lshl_b32 s21, s16, 1')
    A('s_add_u32 s21, s21, s19')
    A(f's_mul_i32 s21, s21, {KC_CH}')
    A(f's_add_u32 s21, s21, {WS_KC}')
    A('v_add_u32 v4, s21, v3')
    A('s_lshl_b32 s22, s20, 2')
    A('v_add_u32 v4, s22, v4')
    A(f'v_add_u32 v5, {KC_COPY}, v4')
    A(f's_mul_i32 s23, s19, {KL_CH}')
    A(f's_mul_i32 s24, s20, {2*KL_COPY}')
    A('s_add_u32 s23, s23, s24')
    A('s_lshl_b32 s25, s16, 14')
    A('s_lshl_b32 s26, s19, 4')
    A('s_add_u32 s26, s26, s25')
    A('s_lshl_b32 s27, s20, 7')
    A('s_add_u32 s26, s26, s27')
    A(f's_add_u32 s26, s26, {WS_XU + 32}')
    A('v_lshlrev_b32 v6, 8, v2')
    A('v_add_u32 v6, s26, v6')
    A(f's_mul_i32 s27, s19, {UT_CH}')
    A(f's_mul_i32 s28, s20, {2*UT_Q}')
    A('s_add_u32 s27, s27, s28')
    A(f's_add_u32 s27, s27, {UT + 512}')
    A('v_lshrrev_b32 v7, 3, v0')
    A('v_lshlrev_b32 v7, 6, v7')
    A('v_and_b32 v8, 7, v0')
    A('v_lshlrev_b32 v8, 2, v8')
    A(f's_add_u32 s25, s25, {WS_XU + 4096}')
    A('v_add3_u32 v7, v7, v8, s25')
    A('v_add_u32 v8, 8192, v7')
    A('s_waitcnt lgkmcnt(0)')
    A('s_mov_b32 m0, s23')
    A('s_lshl_b32 s29, s16, 2')
    A('s_load_dword s30, s[6:7], s29')
    for c in range(4):
        A(f'global_load_lds_dwordx4 v4, s[4:5] offset:{1024*c}')
    A(f's_add_u32 m0, s23, {KL_COPY}')
    A('s_nop 0')
    for c in range(4):
        A(f'global_load_lds_dwordx4 v5, s[4:5] offset:{1024*c}')
    A('s_mov_b32 m0, s27')
    A('s_nop 0')
    A('global_load_lds_dwordx4 v6, s[4:5]')
    A(f's_add_u32 m0, s27, {UT_Q}')
    A('v_add_u32 v6, 64, v6')
    A('global_load_lds_dwordx4 v6, s[4:5]')
    for i in range(8):
        base = 7 if i < 4 else 8
        A(f'global_load_dword {v(16+i)}, {v(base)}, s[4:5] offset:{(i%4)*2048-4096}')
    A('v_mov_b32 v24, 0\nv_mov_b32 v25, 0\nv_mov_b32 v26, 0\nv_mov_b32 v27, 0')
    A('v_lshrrev_b32 v9, 7, v0')
    A(f'v_mul_u32_u24 v9, {UT_CH}, v9')
    A('v_bfe_u32 v10, v0, 5, 2')
    A(f'v_mul_u32_u24 v10, {UT_Q}, v10')
    A('v_and_b32 v11, 31, v0')
    A('v_lshlrev_b32 v11, 4, v11')
    A('v_add3_u32 v9, v9, v10, v11')
    A(f'ds_write_b128 v9, v[24:27] offset:{UT}')
    A('v_lshrrev_b32 v9, 2, v0')
    A(f'v_mul_u32_u24 v9, {KL_COPY}, v9')
    A('v_and_b32 v10, 3, v0')
    A('v_lshlrev_b32 v10, 4, v10')
    A('v_add_u32 v9, v9, v10')
    A('v_cmp_gt_u32 vcc, 32, v0')
    A('s_and_saveexec_b64 s[32:33], vcc')
    lz = A.newlabel('k2_z')
    A(f's_cbranch_execz {lz}')
    A('ds_write_b128 v9, v[24:27] offset:4096')
    A.label(lz)
    A('s_mov_b64 exec, s[32:33]')
    A('v_and_b32 v9, 31, v2')
    A('v_lshrrev_b32 v10, 5, v2')
    A('v_and_b32 v11, 3, v9')
    A('v_sub_u32 v11, 3, v11')
    A(f'v_mul_u32_u24 v11, {KL_COPY}, v11')
    A('v_lshrrev_b32 v12, 2, v9')
    A('v_lshlrev_b32 v12, 3, v12')
    A('v_sub_u32 v11, v11, v12')
    A('v_lshlrev_b32 v12, 4, v10')
    A('v_add_u32 v11, v11, v12')
    A(f's_mul_i32 s31, s19, {KL_CH}')
    A(f's_mul_i32 s34, s20, {32*32}')
    A('s_sub_u32 s31, s31, s34')
    A(f's_add_u32 s31, s31, {2*2044 - 32*94 + 32*28}')
    A('v_add_u32 v12, s31, v11')
    A(f'v_mul_u32_u24 v13, {UT_Q}, v10')
    A('v_lshlrev_b32 v14, 4, v9')
    A('v_add_u32 v13, v13, v14')
    A(f's_mul_i32 s31, s19, {UT_CH}')
    A(f's_mul_i32 s34, s20, {16*16}')
    A('s_sub_u32 s31, s31, s34')
    A(f's_add_u32 s31, s31, {UT + (17+14)*16}')
    A('v_add_u32 v13, s31, v13')
    vA, vB = 12, 13
    ACC0, ACC1 = 128, 144
    for i in range(32): A(f'v_mov_b32 {v(128+i)}, 0')
    A('s_waitcnt vmcnt(0) lgkmcnt(0)')
    A('s_barrier')
    def fr(stage, k): return stage + 4*k
    def offsA(u):
        return [32*(66-2*u), 32*(67-2*u), 32*(2-2*u), 32*(3-2*u)]
    def offsB(u):
        b = (1-u)*16
        return [b, b+2*UT_Q, b+512, b+512+2*UT_Q]
    def reads(stage, u):
        oa, ob = offsA(u), offsB(u)
        def ra(k): return [f'ds_read_b64 {v(fr(stage,k),2)}, {v(vA)} offset:{oa[k]}',
                           f'ds_read_b64 {v(fr(stage,k)+2,2)}, {v(vA)} offset:{oa[k]+8}']
        def rb(k): return [f'ds_read_b128 {v(fr(stage,4+k),4)}, {v(vB)} offset:{ob[k]}']
        return [ra(0)+rb(0), rb(2), ra(2), ra(1)+rb(1), rb(3), ra(3)]
    def mfmas(stage):
        f = lambda k: v(fr(stage,k),4)
        M = 'v_mfma_f32_32x32x16_bf16'
        return [f'{M} {v(ACC0,16)}, {f(0)}, {f(4)}, {v(ACC0,16)}',
                f'{M} {v(ACC1,16)}, {f(0)}, {f(6)}, {v(ACC1,16)}',
                f'{M} {v(ACC1,16)}, {f(2)}, {f(4)}, {v(ACC1,16)}',
                f'{M} {v(ACC0,16)}, {f(1)}, {f(5)}, {v(ACC0,16)}',
                f'{M} {v(ACC1,16)}, {f(1)}, {f(7)}, {v(ACC1,16)}',
                f'{M} {v(ACC1,16)}, {f(3)}, {f(5)}, {v(ACC1,16)}']
    X, Y = 64, 96
    for grp in reads(X, 0):
        for l in grp: A(l)
    A('s_mov_b32 s35, 0')
    loop = A.newlabel('k2_loop')
    A.label(loop)
    waits = [9, 11, 10, 9, 11, 10]
    rY = reads(Y, 1); mX = mfmas(X)
    for k in range(6):
        A(f's_waitcnt lgkmcnt({waits[k]})')
        A(mX[k])
        for l in rY[k]: A(l)
    A(f'v_subrev_u32 {v(vA)}, 128, {v(vA)}')
    A(f'v_subrev_u32 {v(vB)}, 32, {v(vB)}')
    rX = reads(X, 0); mY = mfmas(Y)
    for k in range(6):
        A(f's_waitcnt lgkmcnt({waits[k]})')
        A(mY[k])
        for l in rX[k]: A(l)
    A('s_add_u32 s35, s35, 1')
    A('s_cmp_lt_u32 s35, 8')
    A(f's_cbranch_scc1 {loop}')
    A(f'v_mul_u32_u24 v14, {P_ROW}, v9')
    A('v_lshlrev_b32 v15, 4, v10')
    A(f's_mul_i32 s31, s18, {P_REG}')
    A(f's_add_u32 s31, s31, {PB}')
    A('v_add3_u32 v14, v14, v15, s31')
    A('s_waitcnt lgkmcnt(0)')
    A('s_nop 7')
    for t in range(2):
        for q in range(4):
            A(f'ds_write_b128 v14, {v(128+16*t+4*q,4)} offset:{t*32*P_ROW + q*32}')
    A('v_lshrrev_b32 v14, 5, v0')
    A(f'v_mul_u32_u24 v14, {P_ROW}, v14')
    A('v_and_b32 v15, 31, v0')
    A('v_lshlrev_b32 v15, 2, v15')
    A('v_add_u32 v14, v14, v15')
    A(f'v_add_u32 v14, {PB}, v14')
    A('v_bfe_u32 v15, v0, 3, 2')
    A(f'v_mul_u32_u24 v15, {UT_Q}, v15')
    A('v_lshrrev_b32 v24, 5, v0')
    A('v_lshlrev_b32 v24, 4, v24')
    A('v_and_b32 v25, 7, v0')
    A('v_lshlrev_b32 v25, 1, v25')
    A('v_add3_u32 v15, v15, v24, v25')
    A('v_lshrrev_b32 v24, 4, v0')
    A('v_lshlrev_b32 v24, 14, v24')
    A('v_and_b32 v25, 15, v0')
    A('v_lshlrev_b32 v25, 4, v25')
    A('s_lshr_b32 s31, s16, 4')
    A('s_lshl_b32 s31, s31, 10')
    A('s_bfe_u32 s34, s16, 0x20002')
    A('s_lshl_b32 s34, s34, 8')
    A('s_add_u32 s31, s31, s34')
    A('s_and_b32 s34, s16, 3')
    A('s_lshl_b32 s34, s34, 2')
    A('s_add_u32 s31, s31, s34')
    A(f's_add_u32 s31, s31, {WS_H}')
    A('v_add3_u32 v24, v24, v25, s31')
    A('s_lshl_b32 s36, s30, 16')
    A('s_and_b32 s37, s30, 0xffff0000')
    A('s_mov_b32 s38, 0xffff0000')
    A('s_waitcnt lgkmcnt(0)')
    A('s_barrier')
    for i in range(8):
        o = i*8*P_ROW
        A(f'ds_read_b32 {v(32+4*i)}, v14 offset:{o + 0*P_REG}')
        A(f'ds_read_b32 {v(33+4*i)}, v14 offset:{o + 2*P_REG}')
        A(f'ds_read_b32 {v(34+4*i)}, v14 offset:{o + 1*P_REG}')
        A(f'ds_read_b32 {v(35+4*i)}, v14 offset:{o + 3*P_REG}')
        A(f'ds_read_u16 {v(64+2*i)}, v15 offset:{UT + 512 + i*128}')
        A(f'ds_read_u16 {v(65+2*i)}, v15 offset:{UT + UT_CH + 512 + i*128}')
    for i in range(8):
        A(f's_waitcnt lgkmcnt({min(15, 6*(7-i))})')
        p, u, x = 32+4*i, 64+2*i, 16+i
        t = 80 + 8*(i % 4)
        A(f'v_pk_add_f32 {v(p,2)}, {v(p,2)}, {v(p+2,2)}')
        A(f'v_lshlrev_b32 {v(u)}, 16, {v(u)}')
        A(f'v_lshlrev_b32 {v(u+1)}, 16, {v(u+1)}')
        A(f'v_cvt_pk_bf16_f32 {v(t)}, {v(p)}, {v(p+1)}')
        A(f'v_pk_mul_f32 {v(u,2)}, {v(u,2)}, s[36:37]')
        A(f'v_lshlrev_b32 {v(p)}, 16, {v(t)}')
        A(f'v_and_b32 {v(p+1)}, s38, {v(t)}')
        A(f'v_cvt_pk_bf16_f32 {v(t+1)}, {v(u)}, {v(u+1)}')
        A(f'v_lshlrev_b32 {v(u)}, 16, {v(t+1)}')
        A(f'v_and_b32 {v(u+1)}, s38, {v(t+1)}')
        A(f'v_pk_add_f32 {v(p,2)}, {v(p,2)}, {v(u,2)}')
        A(f'v_lshlrev_b32 {v(t+2)}, 16, {v(x)}')
        A(f'v_and_b32 {v(t+3)}, s38, {v(x)}')
        A(f'v_cvt_pk_bf16_f32 {v(t)}, {v(p)}, {v(p+1)}')
        A(f'v_lshlrev_b32 {v(p)}, 16, {v(t)}')
        A(f'v_and_b32 {v(p+1)}, s38, {v(t)}')
        A(f'v_pk_add_f32 {v(p,2)}, {v(p,2)}, {v(t+2,2)}')
        A(f'v_cvt_pk_bf16_f32 {v(t+4)}, {v(p)}, {v(p+1)}')
        A(f'global_store_dword v24, {v(t+4)}, s[4:5]')
        if i < 7: A('v_add_u32 v24, 0x40000, v24')
    A.label(lex)
    A('s_endpgm')
    return dict(vgpr=160, accum=160, lds=K2_LDS, grid=256, block=256)
```

```python
from core import *

W1_SLICE = 114688
CSL = W1_SLICE
B1L = W1_SLICE + 512
K3_LDS = W1_SLICE + 768

def k3(A, name):
    kernel_header(A, name)
    lex = A.newlabel('k3_exit')
    A('s_cmp_ge_u32 s2, 256')
    A(f's_cbranch_scc1 {lex}')
    A(f's_load_dwordx2 s[4:5], s[0:1], {KA_WS}')
    A(f's_load_dwordx2 s[6:7], s[0:1], {KA_B1}')
    A('s_and_b32 s16, s2, 7')
    A('s_lshr_b32 s17, s2, 3')
    A('s_lshl_b32 s18, s16, 1')
    A('s_lshr_b32 s19, s17, 4')
    A('s_add_u32 s18, s18, s19')
    A('s_and_b32 s19, s17, 15')
    A('v_lshrrev_b32 v1, 6, v0')
    A('v_and_b32 v2, 63, v0')
    A('v_readfirstlane_b32 s20, v1')
    A('v_lshlrev_b32 v3, 4, v2')
    A('s_lshl_b32 s21, s18, 3')
    A('s_lshl_b32 s22, s20, 1')
    A('s_add_u32 s21, s21, s22')
    A('s_lshl_b32 s22, s21, 14')
    A(f's_add_u32 s22, s22, {WS_H + 4096}')
    A('v_add_u32 v4, s22, v3')
    A('v_add_u32 v5, 8192, v4')
    A('v_add_u32 v6, 16384, v4')
    A('v_add_u32 v7, 24576, v4')
    A('s_waitcnt lgkmcnt(0)')
    A(f's_mul_i32 s23, s19, {W1_SLICE}')
    A(f's_add_u32 s23, s23, {WS_W1F}')
    A('s_add_u32 s8, s4, s23')
    A('s_addc_u32 s9, s5, 0')
    A(f's_mov_b32 s10, {W1_SLICE}')
    A('s_mov_b32 s11, 0x20000')
    A(f's_add_u32 s12, s4, {WS_HID}')
    A('s_addc_u32 s13, s5, 0')
    A(f's_mov_b32 s14, {128*56*1024}')
    A('s_mov_b32 s15, 0x20000')
    A(f's_mul_i32 s23, s19, 448')
    A(f's_add_u32 s23, s23, {WS_CS}')
    A('v_add_u32 v8, s23, v3')
    A(f's_mul_i32 s23, s19, 224')
    A('v_add_u32 v9, s23, v3')
    A('s_mov_b64 s[24:25], exec')
    A(f's_mov_b32 m0, {CSL}')
    A('s_mov_b64 exec, 0xfffffff')
    A('global_load_lds_dwordx4 v8, s[4:5]')
    A(f's_mov_b32 m0, {B1L}')
    A('s_mov_b64 exec, 0x3fff')
    A('global_load_lds_dwordx4 v9, s[6:7]')
    A('s_mov_b64 exec, s[24:25]')
    HB = 128
    def Hreg(rt, sidx): return HB + (sidx*2 + rt)*4
    A('s_lshl_b32 s26, s20, 10')
    for c in range(4):
        for sidx in range(4*c, 4*c+4):
            for rt in range(2):
                base = 4 + 2*rt + (sidx >> 3)
                off = (sidx & 7)*1024 - 4096
                A(f'global_load_dwordx4 {v(Hreg(rt,sidx),4)}, {v(base)}, s[4:5] offset:{off}')
        for t in range(7):
            A(f's_add_u32 m0, s26, {t*16384 + c*4096}')
            A('s_nop 0')
            A('buffer_load_dwordx4 v3, s[8:11], m0 offen lds')
    ACC = 64
    def acc(t, rt): return ACC + (t*2 + rt)*4
    WF = 32
    def wf(t): return WF + 4*t
    for i in range(56): A(f'v_mov_b32 {v(ACC+i)}, 0')
    for i in range(4): A(f'v_mov_b32 {v(60+i)}, 0')
    A('v_add_u32 v10, 0x10000, v3')
    A('s_mov_b32 s27, 0x3f803f80')
    def wread(t, sidx):
        if t < 4: return f'ds_read_b128 {v(wf(t),4)}, v3 offset:{t*16384 + sidx*1024}'
        return f'ds_read_b128 {v(wf(t),4)}, v10 offset:{(t-4)*16384 + sidx*1024}'
    A('s_waitcnt vmcnt(45)')
    A('s_barrier')
    for t in range(7): A(wread(t, 0))
    M = 'v_mfma_f32_16x16x32_bf16'
    for sidx in range(16):
        if (sidx+1) % 4 == 0 and sidx < 15:
            c = (sidx+1)//4
            A(f's_waitcnt vmcnt({45 - 15*c})')
            A('s_barrier')
        for t in range(7):
            A(f's_waitcnt lgkmcnt({6 if sidx < 15 else 6-t})')
            for rt in range(2):
                A(f'{M} {v(acc(t,rt),4)}, {v(wf(t),4)}, {v(Hreg(rt,sidx),4)}, {v(acc(t,rt),4)}')
            if sidx < 15: A(wread(t, sidx+1))
        for k in range(4):
            for rt in range(2):
                h = Hreg(rt, sidx) + k
                A(f'v_dot2c_f32_bf16 {v(60+2*rt)}, s27, {v(h)}')
                A(f'v_dot2c_f32_bf16 {v(61+2*rt)}, {v(h)}, {v(h)}')
    A('s_nop 2')
    for i in range(4): A(f'v_mov_b32 {v(12+i)}, {v(60+i)}')
    A('s_nop 1')
    for i in range(4): A(f'v_permlane16_swap_b32 {v(12+i)}, {v(60+i)}')
    A('s_nop 1')
    for i in range(4): A(f'v_add_f32 {v(60+i)}, {v(60+i)}, {v(12+i)}')
    for i in range(4): A(f'v_mov_b32 {v(12+i)}, {v(60+i)}')
    A('s_nop 1')
    for i in range(4): A(f'v_permlane32_swap_b32 {v(12+i)}, {v(60+i)}')
    A('s_nop 1')
    for i in range(4): A(f'v_add_f32 {v(60+i)}, {v(60+i)}, {v(12+i)}')
    inv512 = '0x3b000000'
    RM = [16, 18]
    for rt in range(2):
        sm, sq, r, mr = 60+2*rt, 61+2*rt, RM[rt], RM[rt]+1
        A(f'v_mul_f32 {v(sm)}, {inv512}, {v(sm)}')
        A(f'v_mul_f32 {v(sq)}, {inv512}, {v(sq)}')
        A(f'v_fma_f32 {v(sq)}, -{v(sm)}, {v(sm)}, {v(sq)}')
        A(f'v_max_f32 {v(sq)}, 0, {v(sq)}')
        A(f'v_cvt_pk_bf16_f32 {v(mr)}, {v(sm)}, {v(sq)}')
        A(f'v_and_b32 {v(r)}, 0xffff0000, {v(mr)}')
        A(f'v_lshlrev_b32 {v(mr)}, 16, {v(mr)}')
        A(f'v_add_f32 {v(r)}, 0x3727c5ac, {v(r)}')
        A(f'v_cvt_pk_bf16_f32 {v(r)}, {v(r)}, {v(r)}')
        A(f'v_lshlrev_b32 {v(r)}, 16, {v(r)}')
        A(f'v_sqrt_f32 {v(r)}, {v(r)}')
        A('s_nop 0')
        A(f'v_cvt_pk_bf16_f32 {v(r)}, {v(r)}, {v(r)}')
        A(f'v_lshlrev_b32 {v(r)}, 16, {v(r)}')
        A(f'v_rcp_f32 {v(r)}, {v(r)}')
        A('s_nop 0')
        A(f'v_mul_f32 {v(mr)}, {v(mr)}, {v(r)}')
    A('v_lshrrev_b32 v11, 4, v2')
    A('v_lshlrev_b32 v12, 4, v11')
    A(f'v_add_u32 v12, {CSL}, v12')
    A('v_lshlrev_b32 v13, 3, v11')
    A(f'v_add_u32 v13, {B1L}, v13')
    CS = 128; BB = 160
    for t in range(7):
        A(f'ds_read_b128 {v(CS+4*t,4)}, v12 offset:{64*t}')
        A(f'ds_read_b64 {v(BB+2*t,2)}, v13 offset:{32*t}')
    A('v_mov_b32 v20, 0xbdd2d3e8')
    A('v_mov_b32 v21, 0xbdd2d3e8')
    A('v_mov_b32 v22, 0xc0135761')
    A('v_mov_b32 v23, 0xc0135761')
    A('v_mov_b32 v24, 1.0')
    A('v_mov_b32 v25, 1.0')
    A('s_mov_b32 s28, 0xffff0000')
    A(f's_mul_i32 s29, s21, {56*1024}')
    A('v_add_u32 v14, s29, v3')
    A(f'v_add_u32 v15, {56*1024}, v14')
    A('s_mul_i32 s30, s19, 7')
    A('s_waitcnt lgkmcnt(0)')
    BU = 176
    for t in range(7):
        for k in range(2):
            A(f'v_lshlrev_b32 {v(BU+4*t+2*k)}, 16, {v(BB+2*t+k)}')
            A(f'v_and_b32 {v(BU+4*t+2*k+1)}, s28, {v(BB+2*t+k)}')
    for t in range(7):
        A(f's_add_u32 s31, s30, {t}')
        A('s_lshr_b32 s32, s31, 1')
        A('s_lshl_b32 s32, s32, 10')
        A('s_and_b32 s31, s31, 1')
        A('s_lshl_b32 s31, s31, 3')
        A('s_add_u32 s31, s31, s32')
        for rt in range(2):
            a0 = acc(t, rt)
            T = 208 + 16*rt
            out = T + 14
            for k in range(2):
                z = a0 + 2*k; tt = T + 2*k; e = T + 4 + 2*k; x = T + 8 + 2*k
                A(f'v_pk_mul_f32 {v(tt,2)}, {v(CS+4*t+2*k,2)}, {v(RM[rt],2)} op_sel:[0,1] op_sel_hi:[1,1]')
                A(f'v_pk_fma_f32 {v(z,2)}, {v(z,2)}, {v(RM[rt],2)}, {v(tt,2)} op_sel:[0,0,0] op_sel_hi:[1,0,1] neg_lo:[0,0,1] neg_hi:[0,0,1]')
                A(f'v_cvt_pk_bf16_f32 {v(tt)}, {v(z)}, {v(z+1)}')
                A(f'v_lshlrev_b32 {v(z)}, 16, {v(tt)}')
                A(f'v_and_b32 {v(z+1)}, s28, {v(tt)}')
                A(f'v_pk_add_f32 {v(z,2)}, {v(z,2)}, {v(BU+4*t+2*k,2)}')
                A(f'v_cvt_pk_bf16_f32 {v(tt)}, {v(z)}, {v(z+1)}')
                A(f'v_lshlrev_b32 {v(x)}, 16, {v(tt)}')
                A(f'v_and_b32 {v(x+1)}, s28, {v(tt)}')
                A(f'v_pk_mul_f32 {v(tt,2)}, {v(x,2)}, {v(x,2)}')
                A(f'v_pk_fma_f32 {v(tt,2)}, {v(tt,2)}, v[20:21], v[22:23]')
                A(f'v_pk_mul_f32 {v(tt,2)}, {v(tt,2)}, {v(x,2)}')
                A(f'v_exp_f32 {v(e)}, {v(tt)}')
                A(f'v_exp_f32 {v(e+1)}, {v(tt+1)}')
                A('s_nop 0')
                A(f'v_pk_add_f32 {v(e,2)}, {v(e,2)}, v[24:25]')
                A(f'v_rcp_f32 {v(e)}, {v(e)}')
                A(f'v_rcp_f32 {v(e+1)}, {v(e+1)}')
                A('s_nop 0')
                A(f'v_pk_mul_f32 {v(x,2)}, {v(x,2)}, {v(e,2)}')
                A(f'v_cvt_pk_bf16_f32 {v(out-2+k)}, {v(x)}, {v(x+1)}')
            A(f'buffer_store_dwordx2 {v(out-2,2)}, {v(14+rt)}, s[12:15], s31 offen')
    A.label(lex)
    A('s_endpgm')
    return dict(vgpr=256, accum=256, lds=K3_LDS, grid=256, block=256)
```

```python
from core import *

def k4(A, name):
    kernel_header(A, name)
    lex = A.newlabel('k4_exit')
    A('s_cmp_ge_u32 s2, 256')
    A(f's_cbranch_scc1 {lex}')
    A(f's_load_dwordx2 s[4:5], s[0:1], {KA_WS}')
    A(f's_load_dwordx2 s[6:7], s[0:1], {KA_B2}')
    A(f's_load_dwordx2 s[8:9], s[0:1], {KA_OUT}')
    A('s_and_b32 s16, s2, 7')
    A('s_lshr_b32 s17, s2, 3')
    A('s_lshl_b32 s18, s16, 2')
    A('s_lshr_b32 s19, s17, 3')
    A('s_add_u32 s18, s18, s19')
    A('s_and_b32 s19, s17, 7')
    A('v_lshrrev_b32 v1, 6, v0')
    A('v_and_b32 v2, 63, v0')
    A('v_readfirstlane_b32 s20, v1')
    A('v_lshlrev_b32 v3, 4, v2')
    A('s_mul_i32 s21, s20, 14')
    A('s_lshl_b32 s22, s18, 2')
    A('s_mul_i32 s23, s22, 56')
    A('s_add_u32 s23, s23, s21')
    A('s_lshl_b32 s23, s23, 10')
    A(f's_add_u32 s23, s23, {WS_HID}')
    A('s_lshl_b32 s24, s19, 2')
    A('s_mul_i32 s25, s24, 56')
    A('s_add_u32 s25, s25, s21')
    A('s_lshl_b32 s25, s25, 10')
    A(f's_add_u32 s25, s25, {WS_W2F}')
    for k in range(4):
        A(f's_add_u32 s26, s23, {k*56*1024}')
        A(f'v_add_u32 {v(4+k)}, s26, v3')
        A(f's_add_u32 s26, s25, {k*56*1024}')
        A(f'v_add_u32 {v(8+k)}, s26, v3')
    A('s_waitcnt lgkmcnt(0)')
    NST = 4
    ST = 64
    ACC = 192
    def acc(td, lt): return ACC + (td*4 + lt)*4
    def fr(st, k): return ST + 32*st + 4*k
    def loads(i):
        st = i % NST
        o = []
        off = (i % 4)*1024
        for k in range(4):
            o.append(f'global_load_dwordx4 {v(fr(st,k),4)}, {v(8+k)}, s[4:5] offset:{off}')
            o.append(f'global_load_dwordx4 {v(fr(st,4+k),4)}, {v(4+k)}, s[4:5] offset:{off}')
        if i % 4 == 3:
            for k in range(8): o.append(f'v_add_u32 {v(4+k)}, 4096, {v(4+k)}')
        return o
    A('v_and_b32 v12, 15, v2')
    A('v_lshrrev_b32 v13, 4, v2')
    A('v_lshlrev_b32 v14, 4, v12')
    A('v_lshrrev_b32 v15, 1, v13')
    A('v_lshlrev_b32 v15, 8, v15')
    A('v_and_b32 v16, 1, v13')
    A('v_lshlrev_b32 v16, 3, v16')
    A('v_add3_u32 v14, v14, v15, v16')
    A('s_add_u32 s27, s22, s20')
    A('s_lshl_b32 s28, s27, 14')
    A('s_lshl_b32 s29, s19, 11')
    A('s_add_u32 s28, s28, s29')
    A(f's_add_u32 s28, s28, {WS_H}')
    A('v_add_u32 v14, s28, v14')
    for td in range(4):
        A(f'global_load_dwordx2 {v(24+2*td,2)}, v14, s[4:5] offset:{(td>>1)*1024 + (td&1)*512}')
    A('v_lshlrev_b32 v15, 3, v13')
    A('s_lshl_b32 s29, s19, 7')
    A('v_add_u32 v15, s29, v15')
    for td in range(4):
        A(f'global_load_dwordx2 {v(32+2*td,2)}, v15, s[6:7] offset:{32*td}')
    for i in range(NST-1):
        for l in loads(i): A(l)
    for i in range(64): A(f'v_mov_b32 {v(ACC+i)}, 0')
    M = 'v_mfma_f32_16x16x32_bf16'
    for i in range(14):
        if i + NST-1 < 14:
            for l in loads(i + NST-1): A(l)
            A(f's_waitcnt vmcnt({8*(NST-1)})')
        else:
            A(f's_waitcnt vmcnt({8*(13-i)})')
        st = i % NST
        for td in range(4):
            for lt in range(4):
                A(f'{M} {v(acc(td,lt),4)}, {v(fr(st,td),4)}, {v(fr(st,4+lt),4)}, {v(acc(td,lt),4)}')
    A('s_lshl_b32 s30, s20, 12')
    A('v_add_u32 v17, s30, v3')
    A('s_nop 7')
    for lt in range(4):
        for td in range(4):
            A(f'ds_write_b128 v17, {v(acc(td,lt),4)} offset:{lt*16384 + td*1024}')
    A('s_lshl_b32 s30, s20, 14')
    A('v_add_u32 v17, s30, v3')
    A('s_waitcnt lgkmcnt(0)')
    A('s_barrier')
    for src in range(4):
        for td in range(4):
            A(f'ds_read_b128 {v(64+16*src+4*td,4)}, v17 offset:{src*4096 + td*1024}')
    A('s_lshl_b32 s30, s27, 14')
    A('v_lshlrev_b32 v18, 10, v12')
    A('v_add3_u32 v18, v18, v15, s30')
    A('s_mov_b32 s31, 0xffff0000')
    A('s_waitcnt lgkmcnt(0)')
    for td in range(4):
        b = 64 + 4*td
        for k in range(2):
            p = b + 2*k
            A(f'v_pk_add_f32 {v(p,2)}, {v(p,2)}, {v(p+16,2)}')
            A(f'v_pk_add_f32 {v(p+32,2)}, {v(p+32,2)}, {v(p+48,2)}')
            A(f'v_pk_add_f32 {v(p,2)}, {v(p,2)}, {v(p+32,2)}')
            t = 128 + 8*k
            A(f'v_cvt_pk_bf16_f32 {v(t)}, {v(p)}, {v(p+1)}')
            A(f'v_lshlrev_b32 {v(p)}, 16, {v(t)}')
            A(f'v_and_b32 {v(p+1)}, s31, {v(t)}')
            A(f'v_lshlrev_b32 {v(t+2)}, 16, {v(32+2*td+k)}')
            A(f'v_and_b32 {v(t+3)}, s31, {v(32+2*td+k)}')
            A(f'v_pk_add_f32 {v(p,2)}, {v(p,2)}, {v(t+2,2)}')
            A(f'v_cvt_pk_bf16_f32 {v(t)}, {v(p)}, {v(p+1)}')
            A(f'v_lshlrev_b32 {v(p)}, 16, {v(t)}')
            A(f'v_and_b32 {v(p+1)}, s31, {v(t)}')
            A(f'v_lshlrev_b32 {v(t+2)}, 16, {v(24+2*td+k)}')
            A(f'v_and_b32 {v(t+3)}, s31, {v(24+2*td+k)}')
            A(f'v_pk_add_f32 {v(p,2)}, {v(p,2)}, {v(t+2,2)}')
            A(f'v_cvt_pk_bf16_f32 {v(144+2*td+k)}, {v(p)}, {v(p+1)}')
        A(f'global_store_dwordx2 v18, {v(144+2*td,2)}, s[8:9] offset:{32*td}')
    A.label(lex)
    A('s_endpgm')
    return dict(vgpr=256, accum=256, lds=65536, grid=256, block=256)
```

```python
import sys
sys.path.insert(0,'g')
from core import *
import k1,k2,k3,k4,importlib
REF='sequential_preLN__ssm_conv_s4d__dense_activation_gelu__prompt.s.ref'
def nopk(A,name):
    kernel_header(A,name)
    A('s_endpgm')
    return dict(vgpr=8,accum=8,lds=0,grid=1,block=64)
def build(out, order):
    head=[l for l in open(REF).read().split('\n') if l.startswith(';') and 'offset' in l or l.startswith('; Kernarg')]
    body=Asm(); infos={}
    fns={'prep':('ssm_prep_kernel',k1.k1),'conv':('ssm_conv_kernel',k2.k2),'up':('ffn_up_kernel',k3.k3),'down':('ffn_down_kernel',k4.k4),'nop':('nop_kernel',nopk)}
    used=[]
    for o in order:
        if o not in used: used.append(o)
    for o in used:
        nm,fn=fns[o]; infos[o]=(nm,fn(body,nm))
    txt='\n'.join(head)+'\n'
    for o in order:
        nm,i=infos[o]
        txt+=f"; @launch kernel={nm} grid=({i['grid']},1,1) block=({i['block']},1,1) lds={i['lds']}\n"
    txt+='.amdgcn_target "amdgcn-amd-amdhsa--gfx950"\n.text\n'+body.text()
    txt+='.section .rodata,"a"\n'
    for o in used:
        nm,i=infos[o]
        txt+='.p2align 6\n'+kernel_desc(nm,i['vgpr'],i['accum'])
    open(out,'w').write(txt)
if __name__=='__main__':
    base=['prep','conv','up','down']
    build('v_nop1.s', base+['nop'])
    build('v_nop4.s', base+['nop']*4)
    build('v_2prep.s', ['prep','prep','conv','up','down'])
    build('v_2conv.s', ['prep','conv','conv','up','down'])
    build('v_2up.s', ['prep','conv','up','up','down'])
    build('v_2down.s', ['prep','conv','up','down','down'])
```

```python
class Asm:
    def __init__(self):
        self.lines = []
        self.uid = 0
    def __call__(self, s=''):
        for l in s.split('\n'):
            l = l.rstrip()
            if l.endswith(':') and not l.startswith(' '):
                self.lines.append(l)
            else:
                self.lines.append('    ' + l.strip() if l.strip() else '')
    def label(self, name):
        self.lines.append(name + ':')
    def newlabel(self, base):
        self.uid += 1
        return f'L{base}_{self.uid}'
    def comment(self, s):
        self.lines.append('    ; ' + s)
    def text(self):
        return '\n'.join(self.lines) + '\n'

def v(i, n=1):
    return f'v{i}' if n == 1 else f'v[{i}:{i+n-1}]'
def s(i, n=1):
    return f's{i}' if n == 1 else f's[{i}:{i+n-1}]'
def a(i, n=1):
    return f'a{i}' if n == 1 else f'a[{i}:{i+n-1}]'

def kernel_header(A, name):
    A.lines.append(f'.globl {name}')
    A.lines.append('.p2align 8')
    A.lines.append(f'.type {name},@function')
    A.lines.append(f'{name}:')

def kernel_desc(name, vgpr, accum, sgpr=102):
    return f'''.amdhsa_kernel {name}
  .amdhsa_next_free_vgpr {vgpr}
  .amdhsa_next_free_sgpr {sgpr}
  .amdhsa_accum_offset {accum}
  .amdhsa_group_segment_fixed_size 0
  .amdhsa_kernarg_size 120
  .amdhsa_user_sgpr_count 2
  .amdhsa_user_sgpr_kernarg_segment_ptr 1
  .amdhsa_system_sgpr_workgroup_id_x 1
  .amdhsa_float_denorm_mode_32 3
.end_amdhsa_kernel
'''

KA_U, KA_LOGA, KA_AIM, KA_CRE, KA_CIM, KA_LOGDT, KA_DSKIP, KA_BX, KA_W1, KA_B1, KA_W2, KA_B2, KA_OUT, KA_DBG, KA_WS = [8*i for i in range(15)]

WS_XU  = 0x0000000
WS_KC  = 0x0400000
KC_COPY = 4224
KC_CH = 2*KC_COPY
WS_H   = 0x0900000
WS_W1F = 0x0B00000
WS_W2F = 0x0D00000
WS_HID = 0x1000000
WS_CS  = 0x0F00000
WS_END = 0x1800000

LOG2E = 0x3fb8aa3b
INV2PI = 0x3e22f983

INSTR = False
WS_STAMP = 0x2000000
def stamp(A, idx):
    if not INSTR: return
    A(f's_memrealtime s[{88}:{89}]')
    A('s_waitcnt lgkmcnt(0)')
    A(f's_mov_b32 s{80+idx}, s88')
def stamp_begin(A):
    if not INSTR: return
    for i in range(8): A(f's_mov_b32 s{80+i}, 0')
    A('s_memtime s[90:91]')
    stamp(A, 0)
def stamp_end(A, kidx, nst=7):
    if not INSTR: return
    A('s_waitcnt vmcnt(0) lgkmcnt(0)')
    stamp(A, 6)
    A('s_memtime s[92:93]')
    A(f's_load_dwordx2 s[94:95], s[0:1], {KA_WS}')
    A('s_waitcnt lgkmcnt(0)')
    A('s_sub_u32 s87, s92, s90')
    A('v_lshrrev_b32 v1, 6, v0')
    A('v_cmp_eq_u32 vcc, 0, v0')
    A('s_and_saveexec_b64 s[96:97], vcc')
    lab = A.newlabel('st_skip')
    A(f's_cbranch_execz {lab}')
    A('s_lshl_b32 s98, s2, 5')
    A(f's_add_u32 s98, s98, {WS_STAMP + kidx*0x10000}')
    A('v_mov_b32 v1, s98')
    for i in range(8):
        A(f'v_mov_b32 v2, s{80+i}')
        A(f'global_store_dword v1, v2, s[94:95] offset:{4*i}')
    A('s_waitcnt vmcnt(0)')
    A.label(lab)
```

```python
import core
from core import *

def cmul(A, dst, P, Q, conj_neg=False):
    A(f'v_pk_mul_f32 {v(dst,2)}, {v(P,2)}, {v(Q,2)} op_sel:[0,0] op_sel_hi:[1,0]')
    A(f'v_pk_fma_f32 {v(dst,2)}, {v(P,2)}, {v(Q,2)}, {v(dst,2)} op_sel:[1,1,0] op_sel_hi:[0,1,1] neg_lo:[1,0,0]')

def cexp(A, dst, p_lit, a2, arev, t0, t1):
    if p_lit is None:
        A(f'v_exp_f32 {v(t0)}, {v(a2)}')
        A(f'v_fract_f32 {v(t1)}, {v(arev)}')
    else:
        A(f'v_mul_f32 {v(t0)}, {p_lit}, {v(a2)}')
        A(f'v_mul_f32 {v(t1)}, {p_lit}, {v(arev)}')
        A(f'v_exp_f32 {v(t0)}, {v(t0)}')
        A(f'v_fract_f32 {v(t1)}, {v(t1)}')
    A(f'v_cos_f32 {v(dst)}, {v(t1)}')
    A(f'v_sin_f32 {v(dst+1)}, {v(t1)}')
    A('s_nop 0')
    A(f'v_mul_f32 {v(dst)}, {v(dst)}, {v(t0)}')
    A(f'v_mul_f32 {v(dst+1)}, {v(dst+1)}, {v(t0)}')

WREG = 17408
SY = 8704
ROW = 272

def kgen_role(A):
    A.comment('==== K-gen role: wg < 256 ====')
    stamp_begin(A)
    A(f's_load_dwordx8 s[4:11], s[0:1], {KA_LOGA}')
    A(f's_load_dwordx2 s[12:13], s[0:1], {KA_LOGDT}')
    A(f's_load_dwordx2 s[14:15], s[0:1], {KA_WS}')
    A('s_and_b32 s16, s2, 7')
    A('s_lshl_b32 s16, s16, 5')
    A('s_lshr_b32 s17, s2, 3')
    A('s_add_u32 s16, s16, s17')
    A('v_lshrrev_b32 v1, 6, v0')
    A('v_and_b32 v2, 63, v0')
    A('v_readfirstlane_b32 s18, v1')
    A('v_lshlrev_b32 v3, 1, v0')
    A('s_lshl_b32 s19, s16, 9')
    A('v_add_u32 v3, s19, v3')
    A('v_lshrrev_b32 v4, 7, v0')
    A('v_lshlrev_b32 v4, 1, v4')
    A('s_lshl_b32 s20, s16, 2')
    A('v_add_u32 v4, s20, v4')
    A('s_waitcnt lgkmcnt(0)')
    A('global_load_ushort v14, v4, s[12:13]')
    A('global_load_ushort v10, v3, s[4:5]')
    A('global_load_ushort v11, v3, s[6:7]')
    A('global_load_ushort v12, v3, s[8:9]')
    A('global_load_ushort v13, v3, s[10:11]')
    A(f's_mul_i32 s21, s18, {WREG}')
    A('v_lshlrev_b32 v5, 2, v2')
    A('v_add_u32 v5, s21, v5')
    A('v_and_b32 v6, 31, v2')
    A('v_lshrrev_b32 v7, 5, v2')
    A(f'v_mul_u32_u24 v8, {ROW}, v6')
    A('v_lshlrev_b32 v9, 4, v7')
    A('v_add3_u32 v8, v8, v9, s21')
    A('s_waitcnt vmcnt(4)')
    stamp(A,1)
    A('v_lshlrev_b32 v14, 16, v14')
    A(f'v_mul_f32 v14, {LOG2E:#x}, v14')
    A('v_exp_f32 v14, v14')
    A('s_waitcnt vmcnt(3)')
    A('v_lshlrev_b32 v10, 16, v10')
    A(f'v_mul_f32 v10, {LOG2E:#x}, v10')
    A('v_exp_f32 v10, v10')
    A('v_cvt_pk_bf16_f32 v14, v14, v14')
    A('v_lshlrev_b32 v14, 16, v14')
    A('v_cvt_pk_bf16_f32 v10, v10, v10')
    A('v_lshlrev_b32 v10, 16, v10')
    A('v_mul_f32 v10, v10, v14')
    A(f'v_mul_f32 v10, {LOG2E | 0x80000000:#x}, v10')
    A('s_waitcnt vmcnt(0)')
    A('v_lshlrev_b32 v11, 16, v11')
    A('v_lshlrev_b32 v12, 16, v12')
    A('v_lshlrev_b32 v13, 16, v13')
    A('v_mul_f32 v11, v11, v14')
    A(f'v_mul_f32 v11, {INV2PI:#x}, v11')
    A('v_add_f32 v14, v14, v14')
    a2, arev = 10, 11
    V = [16+2*i for i in range(9)]
    A(f'v_mul_f32 v16, v12, v14')
    A(f'v_mul_f32 v17, v13, v14')
    Z, W, E1 = 34, 36, 38
    cexp(A, W, '0x41000000', a2, arev, 12, 13)
    cexp(A, Z, None, a2, arev, 12, 13)
    cexp(A, E1, '0x43800000', a2, arev, 12, 13)
    E = {1: E1, 2: 40, 3: 42, 4: 44, 5: 46, 6: 48, 7: 50}
    XA, XB = 52, 54
    T = [56, 58, 60, 62]
    C = [64, 65, 66, 67, 68, 69, 70, 71]
    ci = [0]
    def nextc():
        r = C[ci[0] % len(C)]; ci[0] += 1; return r
    ti = [0]
    def nextt():
        r = T[ti[0] % len(T)]; ti[0] += 1; return r
    def emitX(pos, reg):
        c = nextc()
        return [f'v_cvt_pk_bf16_f32 {v(c)}, {v(reg)}, {v(reg+1)}',
                f'ds_write_b32 v5, {v(c)} offset:{pos*ROW}']
    def emitY(rows, reg):
        c = nextc()
        o = [f'v_cvt_pk_bf16_f32 {v(c)}, {v(reg)}, -{v(reg+1)}']
        for r in rows:
            o.append(f'ds_write_b32 v5, {v(c)} offset:{SY + r*ROW}')
        return o
    def cm(dst, P, Q):
        return [f'v_pk_mul_f32 {v(dst,2)}, {v(P,2)}, {v(Q,2)} op_sel:[0,0] op_sel_hi:[1,0]',
                f'v_pk_fma_f32 {v(dst,2)}, {v(P,2)}, {v(Q,2)}, {v(dst,2)} op_sel:[1,1,0] op_sel_hi:[0,1,1] neg_lo:[1,0,0]']
    xs = []
    xs.append([f'v_mov_b32 {v(72)}, 0x3f80', f'ds_write_b32 v5, {v(72)} offset:0'])
    xs.append(emitX(1, W))
    cur = W
    for jx in range(2, 32):
        dst = XA if jx % 2 == 0 else XB
        xs.append(cm(dst, cur, W) + emitX(jx, dst))
        cur = dst
    ys = []
    ys.append(emitY([0], V[0]))
    for h in range(1, 9):
        o = cm(V[h], V[h-1], Z)
        if h < 8: o += emitY([h], V[h])
        ys.append(o)
    ys.append(cm(E[2], E[1], E[1]))
    ys.append(cm(E[3], E[2], E[1]))
    ys.append(cm(E[4], E[2], E[2]))
    ys.append(cm(E[5], E[4], E[1]))
    ys.append(cm(E[6], E[4], E[2]))
    ys.append(cm(E[7], E[4], E[3]))
    def prod(e, h, rows):
        t = nextt()
        return cm(t, E[e], V[h]) + emitY(rows, t)
    ys.append(prod(1, 0, [8]));  ys.append(prod(1, 2, [9])); ys.append(prod(1, 4, [10, 12]))
    ys.append(prod(1, 6, [13])); ys.append(prod(1, 8, [14]))
    ys.append(prod(2, 0, [16])); ys.append(prod(2, 4, [17, 20])); ys.append(prod(2, 8, [21]))
    ys.append(prod(3, 0, [18])); ys.append(prod(3, 4, [19, 22])); ys.append(prod(3, 8, [23]))
    for i, e in enumerate((4, 5, 6, 7)):
        ys.append(prod(e, 0, [24 + 2*i])); ys.append(prod(e, 8, [25 + 2*i]))
    while xs or ys:
        if xs:
            for l in xs.pop(0): A(l)
        if ys:
            for l in ys.pop(0): A(l)
    stamp(A,2)
    for i in range(16): A(f'v_mov_b32 {v(144+i)}, 0')
    for sidx in range(8):
        A(f'ds_read_b128 {v(80+8*sidx,4)}, v8 offset:{SY+32*sidx}')
        A(f'ds_read_b128 {v(84+8*sidx,4)}, v8 offset:{32*sidx}')
    for sidx in range(8):
        A(f's_waitcnt lgkmcnt({min(15, 14-2*sidx)})')
        A(f'v_mfma_f32_32x32x16_bf16 {v(144,16)}, {v(80+8*sidx,4)}, {v(84+8*sidx,4)}, {v(144,16)}')
    A('v_lshlrev_b32 v9, 4, v2')
    A('v_add_u32 v15, s21, v9')
    A('s_xor_b32 s22, s18, 1')
    A(f's_mul_i32 s22, s22, {WREG}')
    A('v_add_u32 v9, s22, v9')
    A('s_lshr_b32 s23, s18, 1')
    A(f's_mul_i32 s23, s23, {2*WREG}')
    A('s_add_u32 s23, s23, 4096')
    A('v_lshlrev_b32 v12, 4, v6')
    A('v_lshlrev_b32 v13, 3, v7')
    A('v_add_u32 v13, v12, v13')
    A('s_add_u32 s24, s23, 504')
    A('v_sub_u32 v13, s24, v13')
    A('s_and_b32 s25, s18, 1')
    A('s_cmp_eq_u32 s25, 0')
    lab1 = A.newlabel('kg_mh1'); labj = A.newlabel('kg_join')
    A(f's_cbranch_scc0 {lab1}')
    A('s_nop 7')
    A(f'ds_write_b128 v15, {v(152,4)}')
    A(f'ds_write_b128 v15, {v(156,4)} offset:1024')
    A('s_waitcnt lgkmcnt(0)')
    A('s_barrier')
    A(f'ds_read_b128 {v(80,4)}, v9')
    A(f'ds_read_b128 {v(84,4)}, v9 offset:1024')
    A('v_mov_b32 v64, 0\nv_mov_b32 v65, 0\nv_mov_b32 v66, 0\nv_mov_b32 v67, 0')
    A('v_mov_b32 v68, s23')
    A('ds_write_b128 v68, v[64:67] offset:4096')
    A('s_waitcnt lgkmcnt(1)')
    for i in range(8): A(f'v_add_f32 {v(144+i)}, {v(144+i)}, {v(80+i)}')
    A('v_cvt_pk_bf16_f32 v70, v147, v146')
    A('v_cvt_pk_bf16_f32 v71, v145, v144')
    A('v_cvt_pk_bf16_f32 v72, v150, v149')
    A('v_cvt_pk_bf16_f32 v73, v148, v148')
    A(f'ds_write_b64 v13, v[70:71] offset:{3584}')
    A(f'ds_write_b64 v13, v[72:73] offset:{3584-512}')
    A(f's_branch {labj}')
    A.label(lab1)
    A('s_nop 7')
    A(f'ds_write_b128 v15, {v(144,4)}')
    A(f'ds_write_b128 v15, {v(148,4)} offset:1024')
    A('s_waitcnt lgkmcnt(0)')
    A('s_barrier')
    A(f'ds_read_b128 {v(80,4)}, v9')
    A(f'ds_read_b128 {v(84,4)}, v9 offset:1024')
    A('v_lshlrev_b32 v64, 10, v7')
    A('v_add_u32 v64, v64, v12')
    A('s_add_u32 s24, s23, 1520')
    A('v_sub_u32 v64, s24, v64')
    A('v_cmp_eq_u32 s[26:27], 1, v7')
    A('v_and_b32 v65, 1, v6')
    A('v_cmp_eq_u32 s[28:29], 1, v65')
    A('s_waitcnt lgkmcnt(0)')
    for i in range(8): A(f'v_add_f32 {v(152+i)}, {v(152+i)}, {v(80+i)}')
    for i in range(2):
        p, sv = 152+2*i, 153+2*i
        A(f'v_cndmask_b32 v66, {v(p)}, {v(sv)}, s[26:27]')
        A(f'v_cvt_pk_bf16_f32 {v(70+2*i)}, {v(sv)}, v66')
        A(f'v_cvt_pk_bf16_f32 {v(71+2*i)}, {v(p)}, {v(p)}')
        A(f'ds_write_b64 v13, {v(70+2*i,2)} offset:{3584-2*(512+256*i)}')
    for i in range(2):
        p, sv = 156+2*i, 157+2*i
        r = 80+4*i
        A(f'v_cndmask_b32 v66, {v(p)}, {v(sv)}, s[28:29]')
        A(f'v_cvt_pk_bf16_f32 {v(r)}, {v(sv)}, {v(sv)}')
        A(f'v_cvt_pk_bf16_f32 {v(r+1)}, {v(sv)}, v66')
        A(f'v_cvt_pk_bf16_f32 {v(r+2)}, {v(p)}, {v(p)}')
        A(f'v_cvt_pk_bf16_f32 {v(r+3)}, {v(p)}, {v(p)}')
        A(f'ds_write_b128 v64, {v(r,4)} offset:{512 if i==0 else 0}')
    A.label(labj)
    A('s_waitcnt lgkmcnt(0)')
    A('s_barrier')
    stamp(A,3)
    A('v_lshrrev_b32 v1, 7, v0')
    A('v_and_b32 v3, 127, v0')
    A('v_lshlrev_b32 v3, 4, v3')
    A(f'v_mul_u32_u24 v4, {2*WREG}, v1')
    A('v_add3_u32 v4, v4, v3, 0')
    A('v_add_u32 v4, 4096, v4')
    A(f'ds_read_b128 v[16:19], v4')
    A(f'ds_read_b32 v20, v4 offset:16')
    A(f'ds_read_b128 v[24:27], v4 offset:2048')
    A(f'ds_read_b32 v28, v4 offset:2064')
    A('s_lshl_b32 s24, s16, 1')
    A('v_add_u32 v5, s24, v1')
    A(f'v_mul_u32_u24 v5, {KC_CH}, v5')
    A('v_add_u32 v5, v5, v3')
    A(f's_add_u32 s14, s14, {WS_KC}')
    A('s_addc_u32 s15, s15, 0')
    A(f'v_add_u32 v6, {KC_COPY}, v5')
    A('s_waitcnt lgkmcnt(2)')
    for k in range(4): A(f'v_alignbit_b32 {v(32+k)}, {v(17+k)}, {v(16+k)}, 16')
    A('global_store_dwordx4 v5, v[16:19], s[14:15]')
    A('global_store_dwordx4 v6, v[32:35], s[14:15]')
    A('s_waitcnt lgkmcnt(0)')
    for k in range(4): A(f'v_alignbit_b32 {v(36+k)}, {v(25+k)}, {v(24+k)}, 16')
    A('global_store_dwordx4 v5, v[24:27], s[14:15] offset:2048')
    A('global_store_dwordx4 v6, v[36:39], s[14:15] offset:2048')
    A('v_mov_b32 v40, 0\nv_mov_b32 v41, 0\nv_mov_b32 v42, 0\nv_mov_b32 v43, 0')
    A('v_add_u32 v5, 4096, v5')
    A('v_add_u32 v6, 4096, v6')
    A('v_cmp_eq_u32 vcc, 0, v3')
    A('s_and_saveexec_b64 s[26:27], vcc')
    lab = A.newlabel('kg_nz')
    A(f's_cbranch_execz {lab}')
    A('global_store_dwordx4 v5, v[40:43], s[14:15]')
    A('global_store_dwordx4 v6, v[40:43], s[14:15]')
    A.label(lab)
    A('s_mov_b64 exec, -1')
    stamp_end(A,0)
    A('s_endpgm')

def ln1_role(A):
    A.comment('==== LN1 + weight relayout role: 256 <= wg < 512 ====')
    stamp_begin(A)
    A(f's_load_dwordx2 s[4:5], s[0:1], {KA_U}')
    A(f's_load_dwordx2 s[6:7], s[0:1], {KA_W1}')
    A(f's_load_dwordx2 s[8:9], s[0:1], {KA_W2}')
    A(f's_load_dwordx2 s[14:15], s[0:1], {KA_WS}')
    A('s_sub_u32 s16, s2, 256')
    A('s_and_b32 s17, s16, 7')
    A('s_lshl_b32 s17, s17, 5')
    A('s_lshr_b32 s18, s16, 3')
    A('s_add_u32 s17, s17, s18')
    A('v_lshrrev_b32 v1, 6, v0')
    A('v_and_b32 v2, 63, v0')
    A('v_readfirstlane_b32 s19, v1')
    A('s_lshl_b32 s20, s17, 13')
    A('v_lshlrev_b32 v3, 2, v0')
    A('v_add_u32 v3, s20, v3')
    A('v_add_u32 v4, 4096, v3')
    A('v_lshlrev_b32 v5, 11, v1')
    A('v_lshlrev_b32 v6, 4, v2')
    A('v_add3_u32 v5, v5, v6, s20')
    A('s_waitcnt lgkmcnt(0)')
    A('global_load_dwordx4 v[8:11], v5, s[4:5]')
    A('global_load_dwordx4 v[12:15], v5, s[4:5] offset:1024')
    for r in range(8):
        base = 3 if r < 4 else 4
        A(f'global_load_dword {v(16+r)}, {v(base)}, s[4:5] offset:{(r%4)*1024}')
    labw1 = A.newlabel('w1'); labw2 = A.newlabel('w2'); labwn = A.newlabel('wnone')
    A('s_mov_b32 s30, 0')
    A('s_cmp_eq_u32 s19, 0')
    A(f's_cbranch_scc1 {labw1}')
    A('s_cmp_eq_u32 s19, 1')
    A(f's_cbranch_scc0 {labwn}')
    A('s_cmp_lt_u32 s16, 224')
    A(f's_cbranch_scc0 {labwn}')
    A('s_mov_b32 s30, 2')
    A('s_lshr_b32 s21, s16, 2')
    A('s_and_b32 s22, s16, 3')
    A('s_lshl_b32 s23, s21, 5')
    A('s_lshl_b32 s24, s22, 2')
    A('s_add_u32 s23, s23, s24')
    A('s_lshl_b32 s23, s23, 10')
    A('v_lshlrev_b32 v6, 4, v2')
    A('v_add_u32 v6, s23, v6')
    A('v_add_u32 v7, 16384, v6')
    for e in range(4):
        A(f'global_load_dwordx4 {v(32+4*e,4)}, v6, s[8:9] offset:{e*1024}')
    for e in range(4):
        A(f'global_load_dwordx4 {v(48+4*e,4)}, v7, s[8:9] offset:{e*1024}')
    A('v_lshrrev_b32 v24, 1, v2')
    A(f'v_mul_u32_u24 v24, {56*1024}, v24')
    A('v_and_b32 v25, 1, v2')
    A('v_lshlrev_b32 v25, 7, v25')
    A('s_lshl_b32 s23, s21, 10')
    A('s_lshl_b32 s24, s22, 8')
    A('s_add_u32 s23, s23, s24')
    A(f's_add_u32 s23, s23, {WS_W2F}')
    A('v_add3_u32 v24, v24, v25, s23')
    A(f's_branch {labwn}')
    A.label(labw1)
    A('s_lshr_b32 s21, s16, 3')
    A('s_cmp_lt_u32 s21, 28')
    A(f's_cbranch_scc0 {labwn}')
    A('s_mov_b32 s30, 1')
    A('s_and_b32 s22, s16, 7')
    A('s_mul_i32 s22, s22, 28')
    A('s_add_u32 s22, s22, s21')
    A('s_lshl_b32 s23, s22, 4')
    A(f'v_mul_u32_u24 v6, {8*3584}, v2')
    A('v_add_u32 v6, s23, v6')
    for e in range(8):
        A(f'global_load_dwordx4 {v(32+4*e,4)}, v6, s[6:7]')
        if e < 7: A('v_add_u32 v6, 3584, v6')
    A('s_lshr_b32 s23, s22, 1')
    A('s_lshl_b32 s23, s23, 14')
    A('s_and_b32 s24, s22, 1')
    A('s_lshl_b32 s24, s24, 7')
    A('s_add_u32 s23, s23, s24')
    A(f's_add_u32 s23, s23, {WS_W1F}')
    A('v_lshlrev_b32 v24, 8, v2')
    A('v_add_u32 v24, s23, v24')
    A('s_lshl_b32 s33, s22, 5')
    A(f's_add_u32 s33, s33, {WS_CS}')
    A.label(labwn)
    A('s_cmp_eq_u32 s30, 0')
    labs0 = A.newlabel('s0'); labs1 = A.newlabel('s1')
    A(f's_cbranch_scc1 {labs0}')
    A('s_waitcnt vmcnt(16)')
    A(f's_branch {labs1}')
    A.label(labs0)
    A('s_waitcnt vmcnt(8)')
    A.label(labs1)
    stamp(A,1)
    A('s_mov_b32 s31, 0x3f803f80')
    for i in range(4): A(f'v_mov_b32 {v(64+i)}, 0')
    for k in range(4):
        A(f'v_dot2c_f32_bf16 v64, s31, {v(8+k)}')
        A(f'v_dot2c_f32_bf16 v65, {v(8+k)}, {v(8+k)}')
        A(f'v_dot2c_f32_bf16 v66, s31, {v(12+k)}')
        A(f'v_dot2c_f32_bf16 v67, {v(12+k)}, {v(12+k)}')
    A('s_nop 1')
    for ctl in ('row_ror:8', 'row_ror:4', 'row_ror:2', 'row_ror:1'):
        for i in range(4):
            A(f'v_add_f32_dpp {v(64+i)}, {v(64+i)}, {v(64+i)} {ctl} row_mask:0xf bank_mask:0xf')
    for ctl, m in (('row_bcast:15', '0xa'), ('row_bcast:31', '0xc')):
        for i in range(4):
            A(f'v_add_f32_dpp {v(64+i)}, {v(64+i)}, {v(64+i)} {ctl} row_mask:{m} bank_mask:0xf')
    inv512 = '0x3b000000'
    for (sm, sq, om, orr) in ((64, 65, 68, 69), (66, 67, 70, 71)):
        A(f'v_mul_f32 {v(sm)}, {inv512}, {v(sm)}')
        A(f'v_mul_f32 {v(sq)}, {inv512}, {v(sq)}')
        A(f'v_fma_f32 {v(sq)}, -{v(sm)}, {v(sm)}, {v(sq)}')
        A(f'v_max_f32 {v(sq)}, 0, {v(sq)}')
        A(f'v_cvt_pk_bf16_f32 {v(om)}, {v(sm)}, {v(sq)}')
        A(f'v_and_b32 {v(orr)}, 0xffff0000, {v(om)}')
        A(f'v_lshlrev_b32 {v(om)}, 16, {v(om)}')
        A(f'v_add_f32 {v(orr)}, 0x3727c5ac, {v(orr)}')
        A(f'v_cvt_pk_bf16_f32 {v(orr)}, {v(orr)}, {v(orr)}')
        A(f'v_lshlrev_b32 {v(orr)}, 16, {v(orr)}')
        A(f'v_sqrt_f32 {v(orr)}, {v(orr)}')
        A('s_nop 0')
        A(f'v_cvt_pk_bf16_f32 {v(orr)}, {v(orr)}, {v(orr)}')
        A(f'v_lshlrev_b32 {v(orr)}, 16, {v(orr)}')
        A(f'v_rcp_f32 {v(orr)}, {v(orr)}')
    A('v_lshlrev_b32 v72, 4, v1')
    A('v_cmp_eq_u32 vcc, 63, v2')
    A('s_and_saveexec_b64 s[28:29], vcc')
    A('ds_write_b128 v72, v[68:71]')
    A('s_mov_b64 exec, s[28:29]')
    labt = A.newlabel('wt')
    A('s_cmp_eq_u32 s30, 0')
    A(f's_cbranch_scc1 {labt}')
    A('s_waitcnt vmcnt(0)')
    A('s_mov_b32 s21, 0x05040100')
    A('s_mov_b32 s22, 0x07060302')
    for i in range(8): A(f'v_mov_b32 {v(144+i)}, 0')
    for c in range(8):
        p = c >> 1
        sel = 's21' if (c & 1) == 0 else 's22'
        o = 96 + 4*(c % 4)
        for m in range(4):
            A(f'v_perm_b32 {v(o+m)}, {v(32+4*(2*m+1)+p)}, {v(32+4*(2*m)+p)}, {sel}')
        A(f'global_store_dwordx4 v24, {v(o,4)}, s[14:15] offset:{16*c}')
        for m in range(4):
            A(f'v_dot2c_f32_bf16 {v(144+c)}, s31, {v(o+m)}')
    A('s_cmp_eq_u32 s30, 1')
    A(f's_cbranch_scc0 {labt}')
    A('s_nop 2')
    for ctl in ('row_ror:8', 'row_ror:4', 'row_ror:2', 'row_ror:1'):
        for i in range(8):
            A(f'v_add_f32_dpp {v(144+i)}, {v(144+i)}, {v(144+i)} {ctl} row_mask:0xf bank_mask:0xf')
    for ctl, m in (('row_bcast:15', '0xa'), ('row_bcast:31', '0xc')):
        for i in range(8):
            A(f'v_add_f32_dpp {v(144+i)}, {v(144+i)}, {v(144+i)} {ctl} row_mask:{m} bank_mask:0xf')
    A('v_mov_b32 v152, s33')
    A('v_cmp_eq_u32 vcc, 63, v2')
    A('s_and_saveexec_b64 s[28:29], vcc')
    A('global_store_dwordx4 v152, v[144:147], s[14:15]')
    A('global_store_dwordx4 v152, v[148:151], s[14:15] offset:16')
    A('s_mov_b64 exec, s[28:29]')
    A.label(labt)
    A('s_waitcnt lgkmcnt(0)')
    A('s_barrier')
    stamp(A,2)
    A('v_mov_b32 v72, 0')
    for i in range(4): A(f'ds_read_b128 {v(76+4*i,4)}, v72 offset:{16*i}')
    A('s_waitcnt vmcnt(0)')
    A('s_mov_b32 s21, 0xffff0000')
    for r in range(8):
        A(f'v_lshlrev_b32 {v(112+2*r)}, 16, {v(16+r)}')
        A(f'v_and_b32 {v(113+2*r)}, s21, {v(16+r)}')
    A('s_waitcnt lgkmcnt(0)')
    for r in range(8):
        A(f'v_pk_add_f32 {v(112+2*r,2)}, {v(112+2*r,2)}, {v(76+2*r,2)} op_sel_hi:[1,0] neg_lo:[0,1] neg_hi:[0,1]')
    for r in range(8):
        A(f'v_cvt_pk_bf16_f32 {v(128+r)}, {v(112+2*r)}, {v(113+2*r)}')
    for r in range(8):
        A(f'v_lshlrev_b32 {v(112+2*r)}, 16, {v(128+r)}')
        A(f'v_and_b32 {v(113+2*r)}, s21, {v(128+r)}')
    for r in range(8):
        A(f'v_pk_mul_f32 {v(112+2*r,2)}, {v(112+2*r,2)}, {v(76+2*r,2)} op_sel:[0,1] op_sel_hi:[1,1]')
    for m in range(4):
        A(f'v_cvt_pk_bf16_f32 {v(136+m)}, {v(112+4*m)}, {v(114+4*m)}')
        A(f'v_cvt_pk_bf16_f32 {v(140+m)}, {v(113+4*m)}, {v(115+4*m)}')
    A('v_lshlrev_b32 v3, 14, v0')
    A('s_lshl_b32 s20, s17, 6')
    A(f's_add_u32 s20, s20, {WS_XU}')
    A('v_add_u32 v3, s20, v3')
    A('global_store_dwordx4 v3, v[16:19], s[14:15]')
    A('global_store_dwordx4 v3, v[20:23], s[14:15] offset:16')
    A('global_store_dwordx4 v3, v[136:139], s[14:15] offset:32')
    A('global_store_dwordx4 v3, v[140:143], s[14:15] offset:48')
    stamp_end(A,0)
    A('s_endpgm')

def k1(A, name):
    kernel_header(A, name)
    A('s_cmp_ge_u32 s2, 512')
    lex = A.newlabel('k1_exit'); lln = A.newlabel('k1_ln')
    A(f's_cbranch_scc1 {lex}')
    A('s_cmp_ge_u32 s2, 256')
    A(f's_cbranch_scc1 {lln}')
    kgen_role(A)
    A.label(lln)
    ln1_role(A)
    A.label(lex)
    A('s_endpgm')
    return dict(vgpr=160, accum=160, lds=4*WREG, grid=512, block=256)
```

```python
from core import *

KL_COPY = 4160
KL_CH = 4*KL_COPY
UT = 2*KL_CH
UT_CH = 6144
UT_Q = 1536
PB = UT + 2*UT_CH
P_REG = 9216
P_ROW = 144
K2_LDS = PB + 4*P_REG

def k2(A, name):
    kernel_header(A, name)
    lex = A.newlabel('k2_exit')
    A('s_cmp_ge_u32 s2, 256')
    A(f's_cbranch_scc1 {lex}')
    stamp_begin(A)
    A(f's_load_dwordx2 s[4:5], s[0:1], {KA_WS}')
    A(f's_load_dwordx2 s[6:7], s[0:1], {KA_DSKIP}')
    A('s_and_b32 s16, s2, 7')
    A('s_lshl_b32 s16, s16, 5')
    A('s_lshr_b32 s17, s2, 3')
    A('s_add_u32 s16, s16, s17')
    A('v_lshrrev_b32 v1, 6, v0')
    A('v_and_b32 v2, 63, v0')
    A('v_readfirstlane_b32 s18, v1')
    A('s_lshr_b32 s19, s18, 1')
    A('s_and_b32 s20, s18, 1')
    A('v_lshlrev_b32 v3, 4, v2')
    A('s_lshl_b32 s21, s16, 1')
    A('s_add_u32 s21, s21, s19')
    A(f's_mul_i32 s21, s21, {KC_CH}')
    A(f's_add_u32 s21, s21, {WS_KC}')
    A('v_add_u32 v4, s21, v3')
    A('s_lshl_b32 s22, s20, 2')
    A('v_add_u32 v4, s22, v4')
    A(f'v_add_u32 v5, {KC_COPY}, v4')
    A(f's_mul_i32 s23, s19, {KL_CH}')
    A(f's_mul_i32 s24, s20, {2*KL_COPY}')
    A('s_add_u32 s23, s23, s24')
    A('s_lshl_b32 s25, s16, 14')
    A('s_lshl_b32 s26, s19, 4')
    A('s_add_u32 s26, s26, s25')
    A('s_lshl_b32 s27, s20, 7')
    A('s_add_u32 s26, s26, s27')
    A(f's_add_u32 s26, s26, {WS_XU + 32}')
    A('v_lshlrev_b32 v6, 8, v2')
    A('v_add_u32 v6, s26, v6')
    A(f's_mul_i32 s27, s19, {UT_CH}')
    A(f's_mul_i32 s28, s20, {2*UT_Q}')
    A('s_add_u32 s27, s27, s28')
    A(f's_add_u32 s27, s27, {UT + 512}')
    A('v_lshrrev_b32 v7, 3, v0')
    A('v_lshlrev_b32 v7, 6, v7')
    A('v_and_b32 v8, 7, v0')
    A('v_lshlrev_b32 v8, 2, v8')
    A(f's_add_u32 s25, s25, {WS_XU + 4096}')
    A('v_add3_u32 v7, v7, v8, s25')
    A('v_add_u32 v8, 8192, v7')
    A('s_waitcnt lgkmcnt(0)')
    A('s_mov_b32 m0, s23')
    A('s_lshl_b32 s29, s16, 2')
    A('s_load_dword s30, s[6:7], s29')
    for c in range(4):
        A(f'global_load_lds_dwordx4 v4, s[4:5] offset:{1024*c}')
    A(f's_add_u32 m0, s23, {KL_COPY}')
    A('s_nop 0')
    for c in range(4):
        A(f'global_load_lds_dwordx4 v5, s[4:5] offset:{1024*c}')
    A('s_mov_b32 m0, s27')
    A('s_nop 0')
    A('global_load_lds_dwordx4 v6, s[4:5]')
    A(f's_add_u32 m0, s27, {UT_Q}')
    A('v_add_u32 v6, 64, v6')
    A('global_load_lds_dwordx4 v6, s[4:5]')
    for i in range(8):
        base = 7 if i < 4 else 8
        A(f'global_load_dword {v(16+i)}, {v(base)}, s[4:5] offset:{(i%4)*2048-4096}')
    A('v_mov_b32 v24, 0\nv_mov_b32 v25, 0\nv_mov_b32 v26, 0\nv_mov_b32 v27, 0')
    A('v_lshrrev_b32 v9, 7, v0')
    A(f'v_mul_u32_u24 v9, {UT_CH}, v9')
    A('v_bfe_u32 v10, v0, 5, 2')
    A(f'v_mul_u32_u24 v10, {UT_Q}, v10')
    A('v_and_b32 v11, 31, v0')
    A('v_lshlrev_b32 v11, 4, v11')
    A('v_add3_u32 v9, v9, v10, v11')
    A(f'ds_write_b128 v9, v[24:27] offset:{UT}')
    A('v_lshrrev_b32 v9, 2, v0')
    A(f'v_mul_u32_u24 v9, {KL_COPY}, v9')
    A('v_and_b32 v10, 3, v0')
    A('v_lshlrev_b32 v10, 4, v10')
    A('v_add_u32 v9, v9, v10')
    A('v_cmp_gt_u32 vcc, 32, v0')
    A('s_and_saveexec_b64 s[32:33], vcc')
    lz = A.newlabel('k2_z')
    A(f's_cbranch_execz {lz}')
    A('ds_write_b128 v9, v[24:27] offset:4096')
    A.label(lz)
    A('s_mov_b64 exec, s[32:33]')
    A('v_and_b32 v9, 31, v2')
    A('v_lshrrev_b32 v10, 5, v2')
    A('v_and_b32 v11, 3, v9')
    A('v_sub_u32 v11, 3, v11')
    A(f'v_mul_u32_u24 v11, {KL_COPY}, v11')
    A('v_lshrrev_b32 v12, 2, v9')
    A('v_lshlrev_b32 v12, 3, v12')
    A('v_sub_u32 v11, v11, v12')
    A('v_lshlrev_b32 v12, 4, v10')
    A('v_add_u32 v11, v11, v12')
    A(f's_mul_i32 s31, s19, {KL_CH}')
    A(f's_mul_i32 s34, s20, {32*32}')
    A('s_sub_u32 s31, s31, s34')
    A(f's_add_u32 s31, s31, {2*2044 - 32*94 + 32*28}')
    A('v_add_u32 v12, s31, v11')
    A(f'v_mul_u32_u24 v13, {UT_Q}, v10')
    A('v_lshlrev_b32 v14, 4, v9')
    A('v_add_u32 v13, v13, v14')
    A(f's_mul_i32 s31, s19, {UT_CH}')
    A(f's_mul_i32 s34, s20, {16*16}')
    A('s_sub_u32 s31, s31, s34')
    A(f's_add_u32 s31, s31, {UT + (17+14)*16}')
    A('v_add_u32 v13, s31, v13')
    vA, vB = 12, 13
    ACC0, ACC1 = 128, 144
    for i in range(32): A(f'v_mov_b32 {v(128+i)}, 0')
    A('s_waitcnt vmcnt(0) lgkmcnt(0)')
    stamp(A,1)
    A('s_barrier')
    stamp(A,2)
    def fr(stage, k): return stage + 4*k
    def offsA(u):
        return [32*(66-2*u), 32*(67-2*u), 32*(2-2*u), 32*(3-2*u)]
    def offsB(u):
        b = (1-u)*16
        return [b, b+2*UT_Q, b+512, b+512+2*UT_Q]
    def reads(stage, u):
        oa, ob = offsA(u), offsB(u)
        def ra(k): return [f'ds_read_b64 {v(fr(stage,k),2)}, {v(vA)} offset:{oa[k]}',
                           f'ds_read_b64 {v(fr(stage,k)+2,2)}, {v(vA)} offset:{oa[k]+8}']
        def rb(k): return [f'ds_read_b128 {v(fr(stage,4+k),4)}, {v(vB)} offset:{ob[k]}']
        return [ra(0)+rb(0), rb(2), ra(2), ra(1)+rb(1), rb(3), ra(3)]
    def mfmas(stage):
        f = lambda k: v(fr(stage,k),4)
        M = 'v_mfma_f32_32x32x16_bf16'
        return [f'{M} {v(ACC0,16)}, {f(0)}, {f(4)}, {v(ACC0,16)}',
                f'{M} {v(ACC1,16)}, {f(0)}, {f(6)}, {v(ACC1,16)}',
                f'{M} {v(ACC1,16)}, {f(2)}, {f(4)}, {v(ACC1,16)}',
                f'{M} {v(ACC0,16)}, {f(1)}, {f(5)}, {v(ACC0,16)}',
                f'{M} {v(ACC1,16)}, {f(1)}, {f(7)}, {v(ACC1,16)}',
                f'{M} {v(ACC1,16)}, {f(3)}, {f(5)}, {v(ACC1,16)}']
    X, Y = 64, 96
    for grp in reads(X, 0):
        for l in grp: A(l)
    A('s_mov_b32 s35, 0')
    loop = A.newlabel('k2_loop')
    A.label(loop)
    waits = [9, 11, 10, 9, 11, 10]
    rY = reads(Y, 1); mX = mfmas(X)
    for k in range(6):
        A(f's_waitcnt lgkmcnt({waits[k]})')
        A(mX[k])
        for l in rY[k]: A(l)
    A(f'v_subrev_u32 {v(vA)}, 128, {v(vA)}')
    A(f'v_subrev_u32 {v(vB)}, 32, {v(vB)}')
    rX = reads(X, 0); mY = mfmas(Y)
    for k in range(6):
        A(f's_waitcnt lgkmcnt({waits[k]})')
        A(mY[k])
        for l in rX[k]: A(l)
    A('s_add_u32 s35, s35, 1')
    A('s_cmp_lt_u32 s35, 8')
    A(f's_cbranch_scc1 {loop}')
    stamp(A,3)
    A(f'v_mul_u32_u24 v14, {P_ROW}, v9')
    A('v_lshlrev_b32 v15, 4, v10')
    A(f's_mul_i32 s31, s18, {P_REG}')
    A(f's_add_u32 s31, s31, {PB}')
    A('v_add3_u32 v14, v14, v15, s31')
    A('s_waitcnt lgkmcnt(0)')
    A('s_nop 7')
    for t in range(2):
        for q in range(4):
            A(f'ds_write_b128 v14, {v(128+16*t+4*q,4)} offset:{t*32*P_ROW + q*32}')
    A('v_lshrrev_b32 v14, 5, v0')
    A(f'v_mul_u32_u24 v14, {P_ROW}, v14')
    A('v_and_b32 v15, 31, v0')
    A('v_lshlrev_b32 v15, 2, v15')
    A('v_add_u32 v14, v14, v15')
    A(f'v_add_u32 v14, {PB}, v14')
    A('v_bfe_u32 v15, v0, 3, 2')
    A(f'v_mul_u32_u24 v15, {UT_Q}, v15')
    A('v_lshrrev_b32 v24, 5, v0')
    A('v_lshlrev_b32 v24, 4, v24')
    A('v_and_b32 v25, 7, v0')
    A('v_lshlrev_b32 v25, 1, v25')
    A('v_add3_u32 v15, v15, v24, v25')
    A('v_lshrrev_b32 v24, 4, v0')
    A('v_lshlrev_b32 v24, 14, v24')
    A('v_and_b32 v25, 15, v0')
    A('v_lshlrev_b32 v25, 4, v25')
    A('s_lshr_b32 s31, s16, 4')
    A('s_lshl_b32 s31, s31, 10')
    A('s_bfe_u32 s34, s16, 0x20002')
    A('s_lshl_b32 s34, s34, 8')
    A('s_add_u32 s31, s31, s34')
    A('s_and_b32 s34, s16, 3')
    A('s_lshl_b32 s34, s34, 2')
    A('s_add_u32 s31, s31, s34')
    A(f's_add_u32 s31, s31, {WS_H}')
    A('v_add3_u32 v24, v24, v25, s31')
    A('s_lshl_b32 s36, s30, 16')
    A('s_and_b32 s37, s30, 0xffff0000')
    A('s_mov_b32 s38, 0xffff0000')
    A('s_waitcnt lgkmcnt(0)')
    A('s_barrier')
    for i in range(8):
        o = i*8*P_ROW
        A(f'ds_read_b32 {v(32+4*i)}, v14 offset:{o + 0*P_REG}')
        A(f'ds_read_b32 {v(33+4*i)}, v14 offset:{o + 2*P_REG}')
        A(f'ds_read_b32 {v(34+4*i)}, v14 offset:{o + 1*P_REG}')
        A(f'ds_read_b32 {v(35+4*i)}, v14 offset:{o + 3*P_REG}')
        A(f'ds_read_u16 {v(64+2*i)}, v15 offset:{UT + 512 + i*128}')
        A(f'ds_read_u16 {v(65+2*i)}, v15 offset:{UT + UT_CH + 512 + i*128}')
    for i in range(8):
        A(f's_waitcnt lgkmcnt({min(15, 6*(7-i))})')
        p, u, x = 32+4*i, 64+2*i, 16+i
        t = 80 + 8*(i % 4)
        A(f'v_pk_add_f32 {v(p,2)}, {v(p,2)}, {v(p+2,2)}')
        A(f'v_lshlrev_b32 {v(u)}, 16, {v(u)}')
        A(f'v_lshlrev_b32 {v(u+1)}, 16, {v(u+1)}')
        A(f'v_cvt_pk_bf16_f32 {v(t)}, {v(p)}, {v(p+1)}')
        A(f'v_pk_mul_f32 {v(u,2)}, {v(u,2)}, s[36:37]')
        A(f'v_lshlrev_b32 {v(p)}, 16, {v(t)}')
        A(f'v_and_b32 {v(p+1)}, s38, {v(t)}')
        A(f'v_cvt_pk_bf16_f32 {v(t+1)}, {v(u)}, {v(u+1)}')
        A(f'v_lshlrev_b32 {v(u)}, 16, {v(t+1)}')
        A(f'v_and_b32 {v(u+1)}, s38, {v(t+1)}')
        A(f'v_pk_add_f32 {v(p,2)}, {v(p,2)}, {v(u,2)}')
        A(f'v_lshlrev_b32 {v(t+2)}, 16, {v(x)}')
        A(f'v_and_b32 {v(t+3)}, s38, {v(x)}')
        A(f'v_cvt_pk_bf16_f32 {v(t)}, {v(p)}, {v(p+1)}')
        A(f'v_lshlrev_b32 {v(p)}, 16, {v(t)}')
        A(f'v_and_b32 {v(p+1)}, s38, {v(t)}')
        A(f'v_pk_add_f32 {v(p,2)}, {v(p,2)}, {v(t+2,2)}')
        A(f'v_cvt_pk_bf16_f32 {v(t+4)}, {v(p)}, {v(p+1)}')
        A(f'global_store_dword v24, {v(t+4)}, s[4:5]')
        if i < 7: A('v_add_u32 v24, 0x40000, v24')
    stamp_end(A,1)
    A.label(lex)
    A('s_endpgm')
    return dict(vgpr=160, accum=160, lds=K2_LDS, grid=256, block=256)
```

```python
from core import *

W1_SLICE = 114688
CSL = W1_SLICE
B1L = W1_SLICE + 512
K3_LDS = W1_SLICE + 768

def k3(A, name):
    kernel_header(A, name)
    lex = A.newlabel('k3_exit')
    A('s_cmp_ge_u32 s2, 256')
    A(f's_cbranch_scc1 {lex}')
    stamp_begin(A)
    A(f's_load_dwordx2 s[4:5], s[0:1], {KA_WS}')
    A(f's_load_dwordx2 s[6:7], s[0:1], {KA_B1}')
    A('s_and_b32 s16, s2, 7')
    A('s_lshr_b32 s17, s2, 3')
    A('s_lshl_b32 s18, s16, 1')
    A('s_lshr_b32 s19, s17, 4')
    A('s_add_u32 s18, s18, s19')
    A('s_and_b32 s19, s17, 15')
    A('v_lshrrev_b32 v1, 6, v0')
    A('v_and_b32 v2, 63, v0')
    A('v_readfirstlane_b32 s20, v1')
    A('v_lshlrev_b32 v3, 4, v2')
    A('s_lshl_b32 s21, s18, 3')
    A('s_lshl_b32 s22, s20, 1')
    A('s_add_u32 s21, s21, s22')
    A('s_lshl_b32 s22, s21, 14')
    A(f's_add_u32 s22, s22, {WS_H + 4096}')
    A('v_add_u32 v4, s22, v3')
    A('v_add_u32 v5, 8192, v4')
    A('v_add_u32 v6, 16384, v4')
    A('v_add_u32 v7, 24576, v4')
    A('s_waitcnt lgkmcnt(0)')
    A(f's_mul_i32 s23, s19, {W1_SLICE}')
    A(f's_add_u32 s23, s23, {WS_W1F}')
    A('s_add_u32 s8, s4, s23')
    A('s_addc_u32 s9, s5, 0')
    A(f's_mov_b32 s10, {W1_SLICE}')
    A('s_mov_b32 s11, 0x20000')
    A(f's_add_u32 s12, s4, {WS_HID}')
    A('s_addc_u32 s13, s5, 0')
    A(f's_mov_b32 s14, {128*56*1024}')
    A('s_mov_b32 s15, 0x20000')
    A(f's_mul_i32 s23, s19, 448')
    A(f's_add_u32 s23, s23, {WS_CS}')
    A('v_add_u32 v8, s23, v3')
    A(f's_mul_i32 s23, s19, 224')
    A('v_add_u32 v9, s23, v3')
    A('s_mov_b64 s[24:25], exec')
    A(f's_mov_b32 m0, {CSL}')
    A('s_mov_b64 exec, 0xfffffff')
    A('global_load_lds_dwordx4 v8, s[4:5]')
    A(f's_mov_b32 m0, {B1L}')
    A('s_mov_b64 exec, 0x3fff')
    A('global_load_lds_dwordx4 v9, s[6:7]')
    A('s_mov_b64 exec, s[24:25]')
    HB = 128
    def Hreg(rt, sidx): return HB + (sidx*2 + rt)*4
    A('s_lshl_b32 s26, s20, 10')
    for c in range(4):
        for sidx in range(4*c, 4*c+4):
            for rt in range(2):
                base = 4 + 2*rt + (sidx >> 3)
                off = (sidx & 7)*1024 - 4096
                A(f'global_load_dwordx4 {v(Hreg(rt,sidx),4)}, {v(base)}, s[4:5] offset:{off}')
        for t in range(7):
            A(f's_add_u32 m0, s26, {t*16384 + c*4096}')
            A('s_nop 0')
            A('buffer_load_dwordx4 v3, s[8:11], m0 offen lds')
    ACC = 64
    def acc(t, rt): return ACC + (t*2 + rt)*4
    WF = 32
    def wf(t): return WF + 4*t
    for i in range(56): A(f'v_mov_b32 {v(ACC+i)}, 0')
    for i in range(4): A(f'v_mov_b32 {v(60+i)}, 0')
    A('v_add_u32 v10, 0x10000, v3')
    A('s_mov_b32 s27, 0x3f803f80')
    def wread(t, sidx):
        if t < 4: return f'ds_read_b128 {v(wf(t),4)}, v3 offset:{t*16384 + sidx*1024}'
        return f'ds_read_b128 {v(wf(t),4)}, v10 offset:{(t-4)*16384 + sidx*1024}'
    stamp(A,1)
    A('s_waitcnt vmcnt(45)')
    A('s_barrier')
    stamp(A,2)
    for t in range(7): A(wread(t, 0))
    M = 'v_mfma_f32_16x16x32_bf16'
    for sidx in range(16):
        if (sidx+1) % 4 == 0 and sidx < 15:
            c = (sidx+1)//4
            A(f's_waitcnt vmcnt({45 - 15*c})')
            A('s_barrier')
        for t in range(7):
            A(f's_waitcnt lgkmcnt({6 if sidx < 15 else 6-t})')
            for rt in range(2):
                A(f'{M} {v(acc(t,rt),4)}, {v(wf(t),4)}, {v(Hreg(rt,sidx),4)}, {v(acc(t,rt),4)}')
            if sidx < 15: A(wread(t, sidx+1))
        for k in range(4):
            for rt in range(2):
                h = Hreg(rt, sidx) + k
                A(f'v_dot2c_f32_bf16 {v(60+2*rt)}, s27, {v(h)}')
                A(f'v_dot2c_f32_bf16 {v(61+2*rt)}, {v(h)}, {v(h)}')
    stamp(A,3)
    A('s_nop 2')
    for i in range(4): A(f'v_mov_b32 {v(12+i)}, {v(60+i)}')
    A('s_nop 1')
    for i in range(4): A(f'v_permlane16_swap_b32 {v(12+i)}, {v(60+i)}')
    A('s_nop 1')
    for i in range(4): A(f'v_add_f32 {v(60+i)}, {v(60+i)}, {v(12+i)}')
    for i in range(4): A(f'v_mov_b32 {v(12+i)}, {v(60+i)}')
    A('s_nop 1')
    for i in range(4): A(f'v_permlane32_swap_b32 {v(12+i)}, {v(60+i)}')
    A('s_nop 1')
    for i in range(4): A(f'v_add_f32 {v(60+i)}, {v(60+i)}, {v(12+i)}')
    inv512 = '0x3b000000'
    RM = [16, 18]
    for rt in range(2):
        sm, sq, r, mr = 60+2*rt, 61+2*rt, RM[rt], RM[rt]+1
        A(f'v_mul_f32 {v(sm)}, {inv512}, {v(sm)}')
        A(f'v_mul_f32 {v(sq)}, {inv512}, {v(sq)}')
        A(f'v_fma_f32 {v(sq)}, -{v(sm)}, {v(sm)}, {v(sq)}')
        A(f'v_max_f32 {v(sq)}, 0, {v(sq)}')
        A(f'v_cvt_pk_bf16_f32 {v(mr)}, {v(sm)}, {v(sq)}')
        A(f'v_and_b32 {v(r)}, 0xffff0000, {v(mr)}')
        A(f'v_lshlrev_b32 {v(mr)}, 16, {v(mr)}')
        A(f'v_add_f32 {v(r)}, 0x3727c5ac, {v(r)}')
        A(f'v_cvt_pk_bf16_f32 {v(r)}, {v(r)}, {v(r)}')
        A(f'v_lshlrev_b32 {v(r)}, 16, {v(r)}')
        A(f'v_sqrt_f32 {v(r)}, {v(r)}')
        A('s_nop 0')
        A(f'v_cvt_pk_bf16_f32 {v(r)}, {v(r)}, {v(r)}')
        A(f'v_lshlrev_b32 {v(r)}, 16, {v(r)}')
        A(f'v_rcp_f32 {v(r)}, {v(r)}')
        A('s_nop 0')
        A(f'v_mul_f32 {v(mr)}, {v(mr)}, {v(r)}')
    A('v_lshrrev_b32 v11, 4, v2')
    A('v_lshlrev_b32 v12, 4, v11')
    A(f'v_add_u32 v12, {CSL}, v12')
    A('v_lshlrev_b32 v13, 3, v11')
    A(f'v_add_u32 v13, {B1L}, v13')
    CS = 128; BB = 160
    for t in range(7):
        A(f'ds_read_b128 {v(CS+4*t,4)}, v12 offset:{64*t}')
        A(f'ds_read_b64 {v(BB+2*t,2)}, v13 offset:{32*t}')
    A('v_mov_b32 v20, 0xbdd2d3e8')
    A('v_mov_b32 v21, 0xbdd2d3e8')
    A('v_mov_b32 v22, 0xc0135761')
    A('v_mov_b32 v23, 0xc0135761')
    A('v_mov_b32 v24, 1.0')
    A('v_mov_b32 v25, 1.0')
    A('s_mov_b32 s28, 0xffff0000')
    A(f's_mul_i32 s29, s21, {56*1024}')
    A('v_add_u32 v14, s29, v3')
    A(f'v_add_u32 v15, {56*1024}, v14')
    A('s_mul_i32 s30, s19, 7')
    A('s_waitcnt lgkmcnt(0)')
    BU = 176
    for t in range(7):
        for k in range(2):
            A(f'v_lshlrev_b32 {v(BU+4*t+2*k)}, 16, {v(BB+2*t+k)}')
            A(f'v_and_b32 {v(BU+4*t+2*k+1)}, s28, {v(BB+2*t+k)}')
    for t in range(7):
        A(f's_add_u32 s31, s30, {t}')
        A('s_lshr_b32 s32, s31, 1')
        A('s_lshl_b32 s32, s32, 10')
        A('s_and_b32 s31, s31, 1')
        A('s_lshl_b32 s31, s31, 3')
        A('s_add_u32 s31, s31, s32')
        for rt in range(2):
            a0 = acc(t, rt)
            T = 208 + 16*rt
            out = T + 14
            for k in range(2):
                z = a0 + 2*k; tt = T + 2*k; e = T + 4 + 2*k; x = T + 8 + 2*k
                A(f'v_pk_mul_f32 {v(tt,2)}, {v(CS+4*t+2*k,2)}, {v(RM[rt],2)} op_sel:[0,1] op_sel_hi:[1,1]')
                A(f'v_pk_fma_f32 {v(z,2)}, {v(z,2)}, {v(RM[rt],2)}, {v(tt,2)} op_sel:[0,0,0] op_sel_hi:[1,0,1] neg_lo:[0,0,1] neg_hi:[0,0,1]')
                A(f'v_cvt_pk_bf16_f32 {v(tt)}, {v(z)}, {v(z+1)}')
                A(f'v_lshlrev_b32 {v(z)}, 16, {v(tt)}')
                A(f'v_and_b32 {v(z+1)}, s28, {v(tt)}')
                A(f'v_pk_add_f32 {v(z,2)}, {v(z,2)}, {v(BU+4*t+2*k,2)}')
                A(f'v_cvt_pk_bf16_f32 {v(tt)}, {v(z)}, {v(z+1)}')
                A(f'v_lshlrev_b32 {v(x)}, 16, {v(tt)}')
                A(f'v_and_b32 {v(x+1)}, s28, {v(tt)}')
                A(f'v_pk_mul_f32 {v(tt,2)}, {v(x,2)}, {v(x,2)}')
                A(f'v_pk_fma_f32 {v(tt,2)}, {v(tt,2)}, v[20:21], v[22:23]')
                A(f'v_pk_mul_f32 {v(tt,2)}, {v(tt,2)}, {v(x,2)}')
                A(f'v_exp_f32 {v(e)}, {v(tt)}')
                A(f'v_exp_f32 {v(e+1)}, {v(tt+1)}')
                A('s_nop 0')
                A(f'v_pk_add_f32 {v(e,2)}, {v(e,2)}, v[24:25]')
                A(f'v_rcp_f32 {v(e)}, {v(e)}')
                A(f'v_rcp_f32 {v(e+1)}, {v(e+1)}')
                A('s_nop 0')
                A(f'v_pk_mul_f32 {v(x,2)}, {v(x,2)}, {v(e,2)}')
                A(f'v_cvt_pk_bf16_f32 {v(out-2+k)}, {v(x)}, {v(x+1)}')
            A(f'buffer_store_dwordx2 {v(out-2,2)}, {v(14+rt)}, s[12:15], s31 offen')
    stamp_end(A,2)
    A.label(lex)
    A('s_endpgm')
    return dict(vgpr=256, accum=256, lds=K3_LDS, grid=256, block=256)
```

```python
from core import *

def k4(A, name):
    kernel_header(A, name)
    lex = A.newlabel('k4_exit')
    A('s_cmp_ge_u32 s2, 256')
    A(f's_cbranch_scc1 {lex}')
    stamp_begin(A)
    A(f's_load_dwordx2 s[4:5], s[0:1], {KA_WS}')
    A(f's_load_dwordx2 s[6:7], s[0:1], {KA_B2}')
    A(f's_load_dwordx2 s[8:9], s[0:1], {KA_OUT}')
    A('s_and_b32 s16, s2, 7')
    A('s_lshr_b32 s17, s2, 3')
    A('s_lshl_b32 s18, s16, 2')
    A('s_lshr_b32 s19, s17, 3')
    A('s_add_u32 s18, s18, s19')
    A('s_and_b32 s19, s17, 7')
    A('v_lshrrev_b32 v1, 6, v0')
    A('v_and_b32 v2, 63, v0')
    A('v_readfirstlane_b32 s20, v1')
    A('v_lshlrev_b32 v3, 4, v2')
    A('s_mul_i32 s21, s20, 14')
    A('s_lshl_b32 s22, s18, 2')
    A('s_mul_i32 s23, s22, 56')
    A('s_add_u32 s23, s23, s21')
    A('s_lshl_b32 s23, s23, 10')
    A(f's_add_u32 s23, s23, {WS_HID}')
    A('s_lshl_b32 s24, s19, 2')
    A('s_mul_i32 s25, s24, 56')
    A('s_add_u32 s25, s25, s21')
    A('s_lshl_b32 s25, s25, 10')
    A(f's_add_u32 s25, s25, {WS_W2F}')
    for k in range(4):
        A(f's_add_u32 s26, s23, {k*56*1024}')
        A(f'v_add_u32 {v(4+k)}, s26, v3')
        A(f's_add_u32 s26, s25, {k*56*1024}')
        A(f'v_add_u32 {v(8+k)}, s26, v3')
    A('s_waitcnt lgkmcnt(0)')
    NST = 4
    ST = 64
    ACC = 192
    def acc(td, lt): return ACC + (td*4 + lt)*4
    def fr(st, k): return ST + 32*st + 4*k
    def loads(i):
        st = i % NST
        o = []
        off = (i % 4)*1024
        for k in range(4):
            o.append(f'global_load_dwordx4 {v(fr(st,k),4)}, {v(8+k)}, s[4:5] offset:{off}')
            o.append(f'global_load_dwordx4 {v(fr(st,4+k),4)}, {v(4+k)}, s[4:5] offset:{off}')
        if i % 4 == 3:
            for k in range(8): o.append(f'v_add_u32 {v(4+k)}, 4096, {v(4+k)}')
        return o
    A('v_and_b32 v12, 15, v2')
    A('v_lshrrev_b32 v13, 4, v2')
    A('v_lshlrev_b32 v14, 4, v12')
    A('v_lshrrev_b32 v15, 1, v13')
    A('v_lshlrev_b32 v15, 8, v15')
    A('v_and_b32 v16, 1, v13')
    A('v_lshlrev_b32 v16, 3, v16')
    A('v_add3_u32 v14, v14, v15, v16')
    A('s_add_u32 s27, s22, s20')
    A('s_lshl_b32 s28, s27, 14')
    A('s_lshl_b32 s29, s19, 11')
    A('s_add_u32 s28, s28, s29')
    A(f's_add_u32 s28, s28, {WS_H}')
    A('v_add_u32 v14, s28, v14')
    for td in range(4):
        A(f'global_load_dwordx2 {v(24+2*td,2)}, v14, s[4:5] offset:{(td>>1)*1024 + (td&1)*512}')
    A('v_lshlrev_b32 v15, 3, v13')
    A('s_lshl_b32 s29, s19, 7')
    A('v_add_u32 v15, s29, v15')
    for td in range(4):
        A(f'global_load_dwordx2 {v(32+2*td,2)}, v15, s[6:7] offset:{32*td}')
    for i in range(NST-1):
        for l in loads(i): A(l)
    for i in range(64): A(f'v_mov_b32 {v(ACC+i)}, 0')
    M = 'v_mfma_f32_16x16x32_bf16'
    stamp(A,1)
    for i in range(14):
        if i == 1: stamp(A,2)
        if i + NST-1 < 14:
            for l in loads(i + NST-1): A(l)
            A(f's_waitcnt vmcnt({8*(NST-1)})')
        else:
            A(f's_waitcnt vmcnt({8*(13-i)})')
        st = i % NST
        for td in range(4):
            for lt in range(4):
                A(f'{M} {v(acc(td,lt),4)}, {v(fr(st,td),4)}, {v(fr(st,4+lt),4)}, {v(acc(td,lt),4)}')
    stamp(A,3)
    A('s_lshl_b32 s30, s20, 12')
    A('v_add_u32 v17, s30, v3')
    A('s_nop 7')
    for lt in range(4):
        for td in range(4):
            A(f'ds_write_b128 v17, {v(acc(td,lt),4)} offset:{lt*16384 + td*1024}')
    A('s_lshl_b32 s30, s20, 14')
    A('v_add_u32 v17, s30, v3')
    A('s_waitcnt lgkmcnt(0)')
    A('s_barrier')
    for src in range(4):
        for td in range(4):
            A(f'ds_read_b128 {v(64+16*src+4*td,4)}, v17 offset:{src*4096 + td*1024}')
    A('s_lshl_b32 s30, s27, 14')
    A('v_lshlrev_b32 v18, 10, v12')
    A('v_add3_u32 v18, v18, v15, s30')
    A('s_mov_b32 s31, 0xffff0000')
    A('s_waitcnt lgkmcnt(0)')
    for td in range(4):
        b = 64 + 4*td
        for k in range(2):
            p = b + 2*k
            A(f'v_pk_add_f32 {v(p,2)}, {v(p,2)}, {v(p+16,2)}')
            A(f'v_pk_add_f32 {v(p+32,2)}, {v(p+32,2)}, {v(p+48,2)}')
            A(f'v_pk_add_f32 {v(p,2)}, {v(p,2)}, {v(p+32,2)}')
            t = 128 + 8*k
            A(f'v_cvt_pk_bf16_f32 {v(t)}, {v(p)}, {v(p+1)}')
            A(f'v_lshlrev_b32 {v(p)}, 16, {v(t)}')
            A(f'v_and_b32 {v(p+1)}, s31, {v(t)}')
            A(f'v_lshlrev_b32 {v(t+2)}, 16, {v(32+2*td+k)}')
            A(f'v_and_b32 {v(t+3)}, s31, {v(32+2*td+k)}')
            A(f'v_pk_add_f32 {v(p,2)}, {v(p,2)}, {v(t+2,2)}')
            A(f'v_cvt_pk_bf16_f32 {v(t)}, {v(p)}, {v(p+1)}')
            A(f'v_lshlrev_b32 {v(p)}, 16, {v(t)}')
            A(f'v_and_b32 {v(p+1)}, s31, {v(t)}')
            A(f'v_lshlrev_b32 {v(t+2)}, 16, {v(24+2*td+k)}')
            A(f'v_and_b32 {v(t+3)}, s31, {v(24+2*td+k)}')
            A(f'v_pk_add_f32 {v(p,2)}, {v(p,2)}, {v(t+2,2)}')
            A(f'v_cvt_pk_bf16_f32 {v(144+2*td+k)}, {v(p)}, {v(p+1)}')
        A(f'global_store_dwordx2 v18, {v(144+2*td,2)}, s[8:9] offset:{32*td}')
    stamp_end(A,3)
    A.label(lex)
    A('s_endpgm')
    return dict(vgpr=256, accum=256, lds=65536, grid=256, block=256)
```

```python
import sys
sys.path.insert(0,'g')
from core import *
import k1,k2,k3,k4,importlib
REF='sequential_preLN__ssm_conv_s4d__dense_activation_gelu__prompt.s.ref'
def nopk(A,name):
    kernel_header(A,name)
    A('s_endpgm')
    return dict(vgpr=8,accum=8,lds=0,grid=1,block=64)
def spink(A,name):
    kernel_header(A,name)
    lab=A.newlabel('sp'); lex=A.newlabel('spx')
    A('s_cmp_ge_u32 s2, 1')
    A(f's_cbranch_scc1 {lex}')
    A(f's_load_dwordx2 s[4:5], s[0:1], {KA_WS}')
    A('s_waitcnt lgkmcnt(0)')
    A(f's_add_u32 s4, s4, {WS_STAMP}')
    A('s_addc_u32 s5, s5, 0')
    A('s_load_dword s6, s[4:5], 0')
    A('s_waitcnt lgkmcnt(0)')
    A('s_mov_b32 s9, 0')
    A.label(lab)
    A('s_memrealtime s[10:11]')
    A('s_waitcnt lgkmcnt(0)')
    A('s_sub_u32 s7, s10, s6')
    A('s_add_u32 s9, s9, 1')
    A('s_cmp_gt_u32 s9, 2000000')
    A(f's_cbranch_scc1 {lex}')
    A('s_cmp_lt_u32 s7, 8000')
    A(f's_cbranch_scc1 {lab}')
    A.label(lex)
    A('s_endpgm')
    return dict(vgpr=8,accum=8,lds=0,grid=1,block=64)
def build(out, order):
    head=[l for l in open(REF).read().split('\n') if l.startswith(';') and 'offset' in l or l.startswith('; Kernarg')]
    body=Asm(); infos={}
    fns={'prep':('ssm_prep_kernel',k1.k1),'conv':('ssm_conv_kernel',k2.k2),'up':('ffn_up_kernel',k3.k3),'down':('ffn_down_kernel',k4.k4),'nop':('nop_kernel',nopk),'spin':('spin_kernel',spink)}
    used=[]
    for o in order:
        if o not in used: used.append(o)
    for o in used:
        nm,fn=fns[o]; infos[o]=(nm,fn(body,nm))
    txt='\n'.join(head)+'\n'
    for o in order:
        nm,i=infos[o]
        txt+=f"; @launch kernel={nm} grid=({i['grid']},1,1) block=({i['block']},1,1) lds={i['lds']}\n"
    txt+='.amdgcn_target "amdgcn-amd-amdhsa--gfx950"\n.text\n'+body.text()
    txt+='.section .rodata,"a"\n'
    for o in used:
        nm,i=infos[o]
        txt+='.p2align 6\n'+kernel_desc(nm,i['vgpr'],i['accum'])
    open(out,'w').write(txt)
if __name__=='__main__':
    import core
    base=['prep','conv','up','down']
    if len(sys.argv)>1 and sys.argv[1]=='spin':
        core.INSTR=True
        build('v_spin.s', base+['spin'])
        build('v_instr.s', base)
```

```python
class Asm:
    def __init__(self):
        self.lines = []
        self.uid = 0
    def __call__(self, s=''):
        for l in s.split('\n'):
            l = l.rstrip()
            if l.endswith(':') and not l.startswith(' '):
                self.lines.append(l)
            elif l.strip():
                self.lines.append('    ' + l.strip())
    def label(self, name):
        self.lines.append(name + ':')
    def newlabel(self, base):
        self.uid += 1
        return f'L{base}_{self.uid}'
    def comment(self, s):
        self.lines.append('    ; ' + s)
    def text(self):
        return '\n'.join(self.lines) + '\n'

def v(i, n=1):
    return f'v{i}' if n == 1 else f'v[{i}:{i+n-1}]'
def s(i, n=1):
    return f's{i}' if n == 1 else f's[{i}:{i+n-1}]'
def a(i, n=1):
    return f'a{i}' if n == 1 else f'a[{i}:{i+n-1}]'

class Queue:
    def __init__(self, A, name, maxn):
        self.A, self.name, self.maxn = A, name, maxn
        self.ops = []
    def issue(self, tag, text=None):
        if text is not None: self.A(text)
        self.ops.append(tag)
    def need(self, tag):
        idx = [i for i, t in enumerate(self.ops) if t == tag]
        assert idx, f'no op tagged {tag}'
        return len(self.ops) - 1 - idx[-1]
    def wait(self, tag):
        n = min(self.need(tag), self.maxn)
        self.A(f's_waitcnt {self.name}({n})')
    def wait_tags(self, tags):
        idx = max(i for i, t in enumerate(self.ops) if t in tags)
        if idx <= getattr(self, 'done', -1): return
        n = min(len(self.ops) - 1 - idx, self.maxn)
        self.A(f's_waitcnt {self.name}({n})')
        self.done = len(self.ops) - 1 - n
    def drain(self):
        self.A(f's_waitcnt {self.name}(0)')
        self.ops = []
        self.done = -1

def kernel_header(A, name):
    A.lines.append(f'.globl {name}')
    A.lines.append('.p2align 8')
    A.lines.append(f'.type {name},@function')
    A.lines.append(f'{name}:')

def kernel_desc(name, vgpr, accum, sgpr=102):
    return f'''.amdhsa_kernel {name}
  .amdhsa_next_free_vgpr {vgpr}
  .amdhsa_next_free_sgpr {sgpr}
  .amdhsa_accum_offset {accum}
  .amdhsa_group_segment_fixed_size 0
  .amdhsa_kernarg_size 120
  .amdhsa_user_sgpr_count 2
  .amdhsa_user_sgpr_kernarg_segment_ptr 1
  .amdhsa_system_sgpr_workgroup_id_x 1
  .amdhsa_float_denorm_mode_32 3
.end_amdhsa_kernel
'''

WS_XT  = 0x0000000
WS_ST  = 0x0200000
WS_SYNC= 0x0210000
WS_W2F = 0x0300000
WS_HT  = 0x0500000
WS_HID = 0x0800000
WS_STAMP = 0x2000000

L_W1 = 0
L_STG = 0
L_XL = 69632
L_W2S = 77824
L_C = 114688
L_UT = L_C
UT_CH = 4608
UT_Q = 2304
L_KL = L_C + 9216
KL_COPY = 4160
KL_CH = 4*KL_COPY
L_P = L_KL
P_REG = 9216
P_TILE = 1152
P_G = 288
L_CS = 160768
L_B1 = 161280
L_HR = L_C
L_HT = L_C + 32768
L_HT2 = 65536
LDS_TOTAL = 163840

LOG2E = 0x3fb8aa3b
INV2PI = 0x3e22f983

S_X, S_LOGA, S_AIM, S_CRE, S_CIM, S_LOGDT, S_DSK, S_BX = 20, 22, 24, 26, 28, 30, 32, 34
S_W1, S_B1, S_W2, S_B2, S_OUT, S_DBG, S_WS = 36, 38, 40, 42, 44, 46, 48
S_XC, S_Y, S_WV, S_J = 16, 17, 18, 19
S_DP = 50
S_R, S_JM = 51, 52

LDSC = ' sc1'
OFFS = None
DBG = set()
INSTR = False
STAMPS = []
MAXST = 22
ST0 = 73
def stamp(A, name):
    if not INSTR: return
    idx = len(STAMPS)
    assert idx < MAXST, 'too many stamps'
    STAMPS.append(str(name))
    A('s_memrealtime s[96:97]')
    A('s_waitcnt lgkmcnt(0)')
    A(f's_mov_b32 s{ST0+idx}, s96')
def stamp_begin(A):
    if not INSTR: return
    A('s_memtime s[98:99]')
    stamp(A, 'start')
def stamp_end(A):
    if not INSTR: return
    A('s_waitcnt vmcnt(0) lgkmcnt(0)')
    stamp(A, 'end')
    A('s_memtime s[96:97]')
    A('s_waitcnt lgkmcnt(0)')
    A('s_sub_u32 s95, s96, s98')
    A('v_cmp_eq_u32 vcc, 0, v0')
    A('s_and_saveexec_b64 s[96:97], vcc')
    lab = A.newlabel('st_skip')
    A(f's_cbranch_execz {lab}')
    A('s_lshl_b32 s98, s2, 7')
    A(f's_add_u32 s98, s98, {WS_STAMP}')
    A('v_mov_b32 v1, s98')
    for i in range(23):
        A(f'v_mov_b32 v2, s{ST0+i}')
        A(f'global_store_dword v1, v2, {s(S_WS,2)} offset:{4*i}')
    A('s_waitcnt vmcnt(0)')
    A.label(lab)
    open('stamps.txt','w').write(' '.join(STAMPS))
```

```python
from core import *
import core

WREG = 17408
SY = 8704
ROW = 272

def prologue(A, lex):
    A('s_cmp_ge_u32 s2, 256')
    A(f's_cbranch_scc1 {lex}')
    stamp_begin(A)
    A('s_load_dwordx16 s[20:35], s[0:1], 0')
    A('s_load_dwordx8 s[36:43], s[0:1], 64')
    A('s_load_dwordx4 s[44:47], s[0:1], 96')
    A('s_load_dwordx2 s[48:49], s[0:1], 112')
    A(f's_and_b32 s{S_XC}, s2, 7')
    A(f's_lshr_b32 s{S_Y}, s2, 3')
    A(f's_lshl_b32 s{S_J}, s{S_XC}, 5')
    A(f's_add_u32 s{S_J}, s{S_J}, s{S_Y}')
    A('v_lshrrev_b32 v1, 6, v0')
    A('v_and_b32 v2, 63, v0')
    A(f'v_readfirstlane_b32 s{S_WV}, v1')
    A(f's_lshl_b32 s{S_R}, s{S_XC}, 1')
    A(f's_lshr_b32 s53, s{S_Y}, 4')
    A(f's_add_u32 s{S_R}, s{S_R}, s53')
    A(f's_and_b32 s{S_JM}, s{S_Y}, 15')

def cexp(A, dst, p_lit, a2, arev, t0, t1):
    if p_lit is None:
        A(f'v_exp_f32 {v(t0)}, {v(a2)}')
        A(f'v_fract_f32 {v(t1)}, {v(arev)}')
    else:
        A(f'v_mul_f32 {v(t0)}, {p_lit}, {v(a2)}')
        A(f'v_mul_f32 {v(t1)}, {p_lit}, {v(arev)}')
        A(f'v_exp_f32 {v(t0)}, {v(t0)}')
        A(f'v_fract_f32 {v(t1)}, {v(t1)}')
    A(f'v_cos_f32 {v(dst)}, {v(t1)}')
    A(f'v_sin_f32 {v(dst+1)}, {v(t1)}')
    A('s_nop 0')
    A(f'v_mul_f32 {v(dst)}, {v(dst)}, {v(t0)}')
    A(f'v_mul_f32 {v(dst+1)}, {v(dst+1)}, {v(t0)}')

def phase_a(A):
    A.comment('================ phase A ================')
    A(f's_lshl_b32 s53, s{S_J}, 13')
    A('v_lshlrev_b32 v3, 2, v0')
    A('v_add_u32 v3, s53, v3')
    A('v_add_u32 v4, 4096, v3')
    A('v_lshlrev_b32 v5, 11, v1')
    A('v_lshlrev_b32 v6, 4, v2')
    A('v_add3_u32 v5, v5, v6, s53')
    A(f's_lshl_b32 s54, s{S_J}, 9')
    A('v_lshlrev_b32 v7, 1, v0')
    A('v_add_u32 v7, s54, v7')
    A('v_lshrrev_b32 v29, 7, v0')
    A('v_lshlrev_b32 v29, 1, v29')
    A(f's_lshl_b32 s54, s{S_J}, 2')
    A('v_add_u32 v29, s54, v29')
    lnw = A.newlabel('a_now2')
    A(f's_cmp_lt_u32 s{S_Y}, 14')
    A('s_cselect_b32 s70, 1, 0')
    A(f's_cbranch_scc0 {lnw}')
    A(f's_mul_i32 s55, s{S_XC}, 14')
    A(f's_add_u32 s55, s55, s{S_Y}')
    A('s_lshl_b32 s55, s55, 2')
    A(f's_add_u32 s55, s55, s{S_WV}')
    A('s_lshr_b32 s71, s55, 3')
    A('s_and_b32 s72, s55, 7')
    A('s_mul_i32 s56, s71, 4682')
    A('s_lshr_b32 s56, s56, 16')
    A('s_mul_i32 s57, s56, 14')
    A('s_sub_u32 s57, s71, s57')
    A('s_lshl_b32 s56, s56, 2')
    A('s_mul_i32 s58, s57, 21846')
    A('s_lshr_b32 s58, s58, 16')
    A('s_mul_i32 s59, s58, 3')
    A('s_sub_u32 s59, s57, s59')
    A('s_add_u32 s58, s58, s56')
    A('s_mul_i32 s58, s58, 112')
    A('s_lshl_b32 s59, s59, 5')
    A('s_add_u32 s58, s58, s59')
    A('s_add_u32 s59, s58, 16')
    A('s_sub_u32 s60, s57, 12')
    A('s_lshl_b32 s60, s60, 1')
    A('s_add_u32 s60, s60, s56')
    A('s_mul_i32 s60, s60, 112')
    A('s_add_u32 s60, s60, 96')
    A('s_add_u32 s61, s60, 112')
    A('s_cmp_lt_u32 s57, 12')
    A('s_cselect_b32 s58, s58, s60')
    A('s_cselect_b32 s59, s59, s61')
    A('s_lshl_b32 s58, s58, 10')
    A('s_lshl_b32 s59, s59, 10')
    A('s_lshl_b32 s60, s72, 7')
    A('v_lshrrev_b32 v30, 3, v2')
    A('v_lshlrev_b32 v30, 10, v30')
    A('v_bfe_u32 v31, v2, 4, 2')
    A('v_lshlrev_b32 v31, 1, v31')
    A('v_and_b32 v32, 7, v2')
    A('v_xor_b32 v31, v31, v32')
    A('v_lshlrev_b32 v31, 4, v31')
    A('v_add3_u32 v30, v30, v31, s60')
    A('v_add_u32 v31, s58, v30')
    A('v_add_u32 v32, 8192, v31')
    A('v_add_u32 v33, s59, v30')
    A('v_add_u32 v34, 8192, v33')
    A(f's_lshl_b32 s62, s{S_WV}, 12')
    A(f's_add_u32 s62, s62, {L_W2S}')
    A('s_waitcnt lgkmcnt(0)')
    for q in range(4):
        A(f's_add_u32 m0, s62, {1024*q}')
        A('s_nop 0')
        A(f'global_load_lds_dwordx4 {v(31+q)}, {s(S_W2,2)}')
    A.label(lnw)
    A('s_waitcnt lgkmcnt(0)')
    Q = Queue(A, 'vmcnt', 63)
    for r in range(8):
        Q.issue('xc', f'global_load_dword {v(16+r)}, {v(3 if r < 4 else 4)}, {s(S_X,2)} offset:{(r%4)*1024}')
    Q.issue('xr', f'global_load_dwordx4 v[8:11], v5, {s(S_X,2)}')
    Q.issue('xr', f'global_load_dwordx4 v[12:15], v5, {s(S_X,2)} offset:1024')
    Q.issue('pp', f'global_load_ushort v24, v29, {s(S_LOGDT,2)}')
    Q.issue('pp', f'global_load_ushort v25, v7, {s(S_LOGA,2)}')
    Q.issue('pp', f'global_load_ushort v26, v7, {s(S_AIM,2)}')
    Q.issue('pp', f'global_load_ushort v27, v7, {s(S_CRE,2)}')
    Q.issue('pp', f'global_load_ushort v28, v7, {s(S_CIM,2)}')
    A('s_mul_i32 s53, s2, 7168')
    A('v_min_u32 v34, 55, v2')
    A('v_lshlrev_b32 v34, 7, v34')
    A('v_add_u32 v34, s53, v34')
    Q.issue('warm', f'global_load_dword v35, v34, {s(S_W1,2)}')
    A(f's_lshl_b32 s53, s{S_J}, 2')
    A(f's_load_dword s{S_DP}, {s(S_DSK,2)}, s53')
    A(f's_lshl_b32 s54, s{S_WV}, 11')
    A(f's_add_u32 s54, s54, {L_XL}')
    A('v_lshlrev_b32 v30, 5, v2')
    A('v_add_u32 v30, s54, v30')
    A('v_add_u32 v31, s54, v6')
    A('v_lshrrev_b32 v32, 3, v2')
    A('v_lshlrev_b32 v32, 15, v32')
    A('v_and_b32 v33, 7, v2')
    A('v_lshlrev_b32 v33, 4, v33')
    A(f's_lshl_b32 s55, s{S_WV}, 19')
    A(f's_lshl_b32 s56, s{S_J}, 7')
    A('s_add_u32 s55, s55, s56')
    A(f's_add_u32 s55, s55, {WS_XT}')
    A('v_add3_u32 v32, v32, v33, s55')
    A('v_add_u32 v33, 0x40000, v32')
    A('s_mov_b32 s56, 0x05040100')
    A('s_mov_b32 s57, 0x07060302')
    Q.wait('xc')
    stamp(A, 'xarr')
    for m in range(4):
        A(f'v_perm_b32 {v(40+m)}, {v(17+2*m)}, {v(16+2*m)}, s56')
        A(f'v_perm_b32 {v(44+m)}, {v(17+2*m)}, {v(16+2*m)}, s57')
    A('ds_write_b128 v30, v[40:43]')
    A('ds_write_b128 v30, v[44:47] offset:16')
    A('ds_read_b128 v[48:51], v31')
    A('ds_read_b128 v[52:55], v31 offset:1024')
    Q.wait('xr')
    A('s_mov_b32 s58, 0x3f803f80')
    for i in range(4): A(f'v_mov_b32 {v(64+i)}, 0')
    for k in range(4):
        A(f'v_dot2c_f32_bf16 v64, s58, {v(8+k)}')
        A(f'v_dot2c_f32_bf16 v65, {v(8+k)}, {v(8+k)}')
        A(f'v_dot2c_f32_bf16 v66, s58, {v(12+k)}')
        A(f'v_dot2c_f32_bf16 v67, {v(12+k)}, {v(12+k)}')
    A('s_waitcnt lgkmcnt(0)')
    Q.issue('st', f'global_store_dwordx4 v32, v[48:51], {s(S_WS,2)} sc1')
    Q.issue('st', f'global_store_dwordx4 v33, v[52:55], {s(S_WS,2)} sc1')
    for ctl in ('row_ror:8', 'row_ror:4', 'row_ror:2', 'row_ror:1'):
        for i in range(4):
            A(f'v_add_f32_dpp {v(64+i)}, {v(64+i)}, {v(64+i)} {ctl} row_mask:0xf bank_mask:0xf')
    for ctl, m in (('row_bcast:15', '0xa'), ('row_bcast:31', '0xc')):
        for i in range(4):
            A(f'v_add_f32_dpp {v(64+i)}, {v(64+i)}, {v(64+i)} {ctl} row_mask:{m} bank_mask:0xf')
    inv512 = '0x3b000000'
    for (sm, sq, o) in ((64, 65, 68), (66, 67, 69)):
        A(f'v_mul_f32 {v(sm)}, {inv512}, {v(sm)}')
        A(f'v_mul_f32 {v(sq)}, {inv512}, {v(sq)}')
        A(f'v_fma_f32 {v(sq)}, -{v(sm)}, {v(sm)}, {v(sq)}')
        A(f'v_max_f32 {v(sq)}, 0, {v(sq)}')
        A(f'v_cvt_pk_bf16_f32 {v(sq)}, {v(sq)}, {v(sq)}')
        A(f'v_lshlrev_b32 {v(sq)}, 16, {v(sq)}')
        A(f'v_add_f32 {v(sq)}, 0x3727c5ac, {v(sq)}')
        A(f'v_cvt_pk_bf16_f32 {v(sq)}, {v(sq)}, {v(sq)}')
        A(f'v_lshlrev_b32 {v(sq)}, 16, {v(sq)}')
        A(f'v_sqrt_f32 {v(sq)}, {v(sq)}')
        A('s_nop 0')
        A(f'v_cvt_pk_bf16_f32 {v(o)}, {v(sm)}, {v(sq)}')
    A(f's_lshl_b32 s54, s{S_J}, 5')
    A(f's_lshl_b32 s55, s{S_WV}, 3')
    A('s_add_u32 s54, s54, s55')
    A(f's_add_u32 s54, s54, {WS_ST}')
    A('v_mov_b32 v70, s54')
    A('v_cmp_eq_u32 vcc, 63, v2')
    A('s_and_saveexec_b64 s[56:57], vcc')
    Q.issue('st', f'global_store_dwordx2 v70, v[68:69], {s(S_WS,2)} sc1')
    A('s_mov_b64 exec, s[56:57]')
    lw = A.newlabel('a_w2done')
    A('s_cmp_eq_u32 s70, 1')
    A(f's_cbranch_scc0 {lw}')
    A('v_lshrrev_b32 v30, 2, v2')
    A('v_bfe_u32 v31, v2, 3, 2')
    A('v_lshlrev_b32 v31, 1, v31')
    A('v_lshlrev_b32 v30, 7, v30')
    A('v_and_b32 v32, 1, v2')
    A('v_lshlrev_b32 v32, 3, v32')
    A('v_bfe_u32 v33, v2, 1, 1')
    A('v_lshlrev_b32 v33, 4, v33')
    A('v_add3_u32 v30, v30, v32, v33')
    A('v_add_u32 v30, s62, v30')
    for td in range(4):
        A(f'v_xor_b32 v34, {2*td}, v31')
        A(f'v_lshl_add_u32 {v(36+td)}, v34, 4, v30')
    for td in range(4):
        A(f'ds_read_b64_tr_b16 {v(40+4*td,2)}, {v(36+td)}')
        A(f'ds_read_b64_tr_b16 {v(42+4*td,2)}, {v(36+td)} offset:2048')
    A('s_mul_i32 s55, s72, 224')
    A('s_add_u32 s55, s55, s71')
    A('s_lshl_b32 s55, s55, 10')
    A(f's_add_u32 s55, s55, {WS_W2F}')
    A('v_add_u32 v34, s55, v6')
    for td in range(4):
        A(f's_waitcnt lgkmcnt({6-2*td})')
        A(f'global_store_dwordx4 v34, {v(40+4*td,4)}, {s(S_WS,2)} sc1')
        if td < 3: A(f'v_add_u32 v34, {56*1024}, v34')
    A.label(lw)
    lz = A.newlabel('a_nz')
    A('s_cmp_eq_u32 s2, 0')
    A(f's_cbranch_scc0 {lz}')
    A(f's_cmp_eq_u32 s{S_WV}, 0')
    A(f's_cbranch_scc0 {lz}')
    A('v_lshlrev_b32 v70, 7, v2')
    A(f'v_add_u32 v70, {WS_SYNC}, v70')
    A('v_mov_b32 v71, 0')
    A('s_mov_b64 s[56:57], exec')
    A('s_mov_b64 exec, 0xffffff')
    A(f'global_store_dword v70, v71, {s(S_WS,2)} sc1')
    A('s_mov_b64 exec, s[56:57]')
    A.label(lz)
    A('v_mov_b32 v72, 0\nv_mov_b32 v73, 0\nv_mov_b32 v74, 0\nv_mov_b32 v75, 0')
    A('v_lshrrev_b32 v70, 5, v2')
    A(f'v_mul_u32_u24 v70, {UT_CH}, v70')
    A('v_bfe_u32 v71, v2, 4, 1')
    A(f'v_mul_u32_u24 v71, {UT_Q}, v71')
    A('v_add_u32 v70, v70, v71')
    A('v_and_b32 v71, 15, v2')
    A('v_lshlrev_b32 v71, 4, v71')
    A(f'v_add3_u32 v70, v70, v71, 0')
    A(f'v_add_u32 v70, {L_UT}, v70')
    A(f'v_add_u32 v71, {L_CS}, v6')
    A(f's_cmp_eq_u32 s{S_WV}, 0')
    lz2 = A.newlabel('a_z2'); lz3 = A.newlabel('a_z3')
    A(f's_cbranch_scc0 {lz2}')
    A('ds_write_b128 v70, v[72:75]')
    A(f's_branch {lz3}')
    A.label(lz2)
    A(f's_cmp_eq_u32 s{S_WV}, 1')
    A(f's_cbranch_scc0 {lz3}')
    A('s_mov_b64 s[56:57], exec')
    A('s_mov_b64 exec, 0xfffffff')
    A('ds_write_b128 v71, v[72:75]')
    A('s_mov_b64 exec, s[56:57]')
    A.label(lz3)
    A('s_waitcnt vmcnt(0) lgkmcnt(0)')
    A('s_barrier')
    stamp(A, 'drainA')
    arrive(A, 'dbg', None)
    kgen(A)

def arrive(A, kind, arg):
    lab = A.newlabel('arr')
    A(f's_cmp_eq_u32 s{S_WV}, 0')
    A(f's_cbranch_scc0 {lab}')
    if kind == 'dbg':
        A('s_and_b32 s56, s2, 3')
        A('s_lshl_b32 s56, s56, 6')
        base = S_DBG
    elif kind == 'b2':
        A(f's_lshl_b32 s56, s{S_XC}, 7')
        A(f's_add_u32 s56, s56, {WS_SYNC}')
        base = S_WS
    elif kind == 'b3':
        A(f's_lshl_b32 s56, s{S_R}, 7')
        A(f's_add_u32 s56, s56, {WS_SYNC + 1024}')
        base = S_WS
    A('v_mov_b32 v3, s56')
    A('v_mov_b32 v4, 1')
    A('s_mov_b64 s[56:57], exec')
    A('s_mov_b64 exec, 1')
    A(f'global_atomic_add v3, v4, {s(base,2)} sc1')
    A('s_mov_b64 exec, s[56:57]')
    A.label(lab)

def poll(A, kind):
    lab = A.newlabel('pol'); lp = A.newlabel('poll'); ld = A.newlabel('pold')
    A(f's_cmp_eq_u32 s{S_WV}, 0')
    A(f's_cbranch_scc0 {lab}')
    if kind == 'dbg':
        A('v_and_b32 v3, 3, v2'); A('v_lshlrev_b32 v3, 6, v3'); base = S_DBG; tgt = 64
    elif kind == 'b2':
        A('v_and_b32 v3, 7, v2'); A('v_lshlrev_b32 v3, 7, v3'); A(f'v_add_u32 v3, {WS_SYNC}, v3'); base = S_WS; tgt = 32
    elif kind == 'b3':
        A(f's_lshl_b32 s56, s{S_R}, 7'); A(f's_add_u32 s56, s56, {WS_SYNC + 1024}'); A('v_mov_b32 v3, s56'); base = S_WS; tgt = 16
    A('s_mov_b32 s56, 0')
    A.label(lp)
    A(f'global_load_dword v4, v3, {s(base,2)} sc1')
    A('s_waitcnt vmcnt(0)')
    A(f'v_cmp_le_u32 vcc, {tgt}, v4')
    A('s_cmp_eq_u64 vcc, exec')
    A(f's_cbranch_scc1 {ld}')
    A('s_add_u32 s56, s56, 1')
    A('s_cmp_lt_u32 s56, 0x40000')
    A(f's_cbranch_scc1 {lp}')
    A.label(ld)
    A.label(lab)
    A('s_barrier')

def kgen(A):
    A.comment('---- K generation')
    dt, la, ai, cr, ci = 24, 25, 26, 27, 28
    A(f's_mul_i32 s63, s{S_WV}, {WREG}')
    A('v_lshlrev_b32 v5, 2, v2')
    A('v_add_u32 v5, s63, v5')
    A('v_and_b32 v7, 31, v2')
    A('v_lshrrev_b32 v29, 5, v2')
    A(f'v_mul_u32_u24 v8, {ROW}, v7')
    A('v_lshlrev_b32 v9, 4, v29')
    A('v_add3_u32 v8, v8, v9, s63')
    A(f'v_lshlrev_b32 {v(dt)}, 16, {v(dt)}')
    A(f'v_lshlrev_b32 {v(la)}, 16, {v(la)}')
    A(f'v_mul_f32 {v(dt)}, {LOG2E:#x}, {v(dt)}')
    A(f'v_mul_f32 {v(la)}, {LOG2E:#x}, {v(la)}')
    A(f'v_exp_f32 {v(dt)}, {v(dt)}')
    A(f'v_exp_f32 {v(la)}, {v(la)}')
    A(f'v_lshlrev_b32 {v(ai)}, 16, {v(ai)}')
    A(f'v_lshlrev_b32 {v(cr)}, 16, {v(cr)}')
    A(f'v_lshlrev_b32 {v(ci)}, 16, {v(ci)}')
    A(f'v_cvt_pk_bf16_f32 {v(dt)}, {v(dt)}, {v(dt)}')
    A(f'v_cvt_pk_bf16_f32 {v(la)}, {v(la)}, {v(la)}')
    A(f'v_lshlrev_b32 {v(dt)}, 16, {v(dt)}')
    A(f'v_lshlrev_b32 {v(la)}, 16, {v(la)}')
    A(f'v_mul_f32 {v(la)}, {v(la)}, {v(dt)}')
    A(f'v_mul_f32 {v(la)}, {LOG2E | 0x80000000:#x}, {v(la)}')
    A(f'v_mul_f32 {v(ai)}, {v(ai)}, {v(dt)}')
    A(f'v_mul_f32 {v(ai)}, {INV2PI:#x}, {v(ai)}')
    A(f'v_add_f32 {v(dt)}, {v(dt)}, {v(dt)}')
    a2, arev = la, ai
    V = [30+2*i for i in range(9)]
    A(f'v_mul_f32 {v(V[0])}, {v(cr)}, {v(dt)}')
    A(f'v_mul_f32 {v(V[0]+1)}, {v(ci)}, {v(dt)}')
    Z, W, E1 = 48, 50, 52
    cexp(A, W, '0x41000000', a2, arev, 10, 11)
    cexp(A, Z, None, a2, arev, 10, 11)
    cexp(A, E1, '0x43800000', a2, arev, 10, 11)
    E = {1: E1, 2: 54, 3: 56, 4: 58, 5: 60, 6: 62, 7: 64}
    XA, XB = 66, 68
    T = [70, 72, 74, 76]
    C = [10, 11, 12, 13, 14, 15, 16, 17]
    ci_ = [0]; ti = [0]
    def nextc():
        r = C[ci_[0] % len(C)]; ci_[0] += 1; return r
    def nextt():
        r = T[ti[0] % len(T)]; ti[0] += 1; return r
    def cm(dst, P, Qq):
        return [f'v_pk_mul_f32 {v(dst,2)}, {v(P,2)}, {v(Qq,2)} op_sel:[0,0] op_sel_hi:[1,0]',
                f'v_pk_fma_f32 {v(dst,2)}, {v(P,2)}, {v(Qq,2)}, {v(dst,2)} op_sel:[1,1,0] op_sel_hi:[0,1,1] neg_lo:[1,0,0]']
    xs = []
    xs.append(lambda: ['v_mov_b32 v18, 0x3f80', 'ds_write_b32 v5, v18 offset:0'])
    def emitX(pos, reg):
        c = nextc()
        return [f'v_cvt_pk_bf16_f32 {v(c)}, {v(reg)}, {v(reg+1)}', f'ds_write_b32 v5, {v(c)} offset:{pos*ROW}']
    def emitY(rows, reg):
        c = nextc()
        return [f'v_cvt_pk_bf16_f32 {v(c)}, {v(reg)}, -{v(reg+1)}'] + [f'ds_write_b32 v5, {v(c)} offset:{SY + r*ROW}' for r in rows]
    xs.append(lambda: emitX(1, W))
    for jx in range(2, 32):
        dst = XA if jx % 2 == 0 else XB
        src = W if jx == 2 else (XB if jx % 2 == 0 else XA)
        xs.append(lambda jx=jx, dst=dst, src=src: cm(dst, src, W) + emitX(jx, dst))
    ys = [lambda: emitY([0], V[0])]
    for h in range(1, 9):
        ys.append(lambda h=h: cm(V[h], V[h-1], Z) + (emitY([h], V[h]) if h < 8 else []))
    for (d, p, q) in ((2,1,1),(3,2,1),(4,2,2),(5,4,1),(6,4,2),(7,4,3)):
        ys.append(lambda d=d, p=p, q=q: cm(E[d], E[p], E[q]))
    def prod(e, h, rows):
        def f():
            t = nextt()
            return cm(t, E[e], V[h]) + emitY(rows, t)
        return f
    for (e, h, rows) in ((1,0,[8]),(1,2,[9]),(1,4,[10,12]),(1,6,[13]),(1,8,[14]),
                         (2,0,[16]),(2,4,[17,20]),(2,8,[21]),(3,0,[18]),(3,4,[19,22]),(3,8,[23]),
                         (4,0,[24]),(4,8,[25]),(5,0,[26]),(5,8,[27]),(6,0,[28]),(6,8,[29]),(7,0,[30]),(7,8,[31])):
        ys.append(prod(e, h, rows))
    while xs or ys:
        if xs:
            for l in xs.pop(0)(): A(l)
        if ys:
            for l in ys.pop(0)(): A(l)
    stamp(A, 'chains')
    for i in range(16): A(f'v_mov_b32 {v(144+i)}, 0')
    for k in range(8):
        A(f'ds_read_b128 {v(80+8*k,4)}, v8 offset:{SY+32*k}')
        A(f'ds_read_b128 {v(84+8*k,4)}, v8 offset:{32*k}')
    for k in range(8):
        A(f's_waitcnt lgkmcnt({14-2*k})')
        A(f'v_mfma_f32_32x32x16_bf16 {v(144,16)}, {v(80+8*k,4)}, {v(84+8*k,4)}, {v(144,16)}')
    A('v_add_u32 v15, s63, v6')
    A(f's_xor_b32 s54, s{S_WV}, 1')
    A(f's_mul_i32 s54, s54, {WREG}')
    A('v_add_u32 v9, s54, v6')
    A(f's_lshr_b32 s55, s{S_WV}, 1')
    A(f's_mul_i32 s55, s55, {2*WREG}')
    A('s_add_u32 s55, s55, 4096')
    A('v_lshlrev_b32 v12, 4, v7')
    A('v_lshlrev_b32 v13, 3, v29')
    A('v_add_u32 v13, v12, v13')
    A('s_add_u32 s56, s55, 504')
    A('v_sub_u32 v13, s56, v13')
    A(f's_and_b32 s57, s{S_WV}, 1')
    A('s_cmp_eq_u32 s57, 0')
    lab1 = A.newlabel('kg_mh1'); labj = A.newlabel('kg_join')
    A(f's_cbranch_scc0 {lab1}')
    A('s_nop 7')
    A(f'ds_write_b128 v15, {v(152,4)}')
    A(f'ds_write_b128 v15, {v(156,4)} offset:1024')
    A('s_waitcnt lgkmcnt(0)')
    A('s_barrier')
    A(f'ds_read_b128 {v(80,4)}, v9')
    A(f'ds_read_b128 {v(84,4)}, v9 offset:1024')
    A('v_mov_b32 v64, 0\nv_mov_b32 v65, 0\nv_mov_b32 v66, 0\nv_mov_b32 v67, 0')
    A('v_mov_b32 v68, s55')
    A('s_mov_b64 s[56:57], exec')
    A('s_mov_b64 exec, 1')
    A('ds_write_b128 v68, v[64:67] offset:4096')
    A('s_mov_b64 exec, s[56:57]')
    A('s_waitcnt lgkmcnt(1)')
    for i in range(8): A(f'v_add_f32 {v(144+i)}, {v(144+i)}, {v(80+i)}')
    A('v_cvt_pk_bf16_f32 v70, v147, v146')
    A('v_cvt_pk_bf16_f32 v71, v145, v144')
    A('v_cvt_pk_bf16_f32 v72, v150, v149')
    A('v_cvt_pk_bf16_f32 v73, v148, v148')
    A(f'ds_write_b64 v13, v[70:71] offset:{3584}')
    A(f'ds_write_b64 v13, v[72:73] offset:{3584-512}')
    A(f's_branch {labj}')
    A.label(lab1)
    A('s_nop 7')
    A(f'ds_write_b128 v15, {v(144,4)}')
    A(f'ds_write_b128 v15, {v(148,4)} offset:1024')
    A('s_waitcnt lgkmcnt(0)')
    A('s_barrier')
    A(f'ds_read_b128 {v(80,4)}, v9')
    A(f'ds_read_b128 {v(84,4)}, v9 offset:1024')
    A('v_lshlrev_b32 v64, 10, v29')
    A('v_add_u32 v64, v64, v12')
    A('s_add_u32 s56, s55, 1520')
    A('v_sub_u32 v64, s56, v64')
    A('v_cmp_eq_u32 s[58:59], 1, v29')
    A('v_and_b32 v65, 1, v7')
    A('v_cmp_eq_u32 s[60:61], 1, v65')
    A('s_waitcnt lgkmcnt(0)')
    for i in range(8): A(f'v_add_f32 {v(152+i)}, {v(152+i)}, {v(80+i)}')
    for i in range(2):
        p, sv = 152+2*i, 153+2*i
        A(f'v_cndmask_b32 v66, {v(p)}, {v(sv)}, s[58:59]')
        A(f'v_cvt_pk_bf16_f32 {v(70+2*i)}, {v(sv)}, v66')
        A(f'v_cvt_pk_bf16_f32 {v(71+2*i)}, {v(p)}, {v(p)}')
        A(f'ds_write_b64 v13, {v(70+2*i,2)} offset:{3584-2*(512+256*i)}')
    for i in range(2):
        p, sv = 156+2*i, 157+2*i
        r = 80+4*i
        A(f'v_cndmask_b32 v66, {v(p)}, {v(sv)}, s[60:61]')
        A(f'v_cvt_pk_bf16_f32 {v(r)}, {v(sv)}, {v(sv)}')
        A(f'v_cvt_pk_bf16_f32 {v(r+1)}, {v(sv)}, v66')
        A(f'v_cvt_pk_bf16_f32 {v(r+2)}, {v(p)}, {v(p)}')
        A(f'v_cvt_pk_bf16_f32 {v(r+3)}, {v(p)}, {v(p)}')
        A(f'ds_write_b128 v64, {v(r,4)} offset:{512 if i==0 else 0}')
    A.label(labj)
    A('s_waitcnt lgkmcnt(0)')
    A('s_barrier')
    A('v_lshrrev_b32 v3, 7, v0')
    A('v_and_b32 v4, 127, v0')
    A('v_lshlrev_b32 v4, 4, v4')
    A(f'v_mul_u32_u24 v5, {2*WREG}, v3')
    A('v_add_u32 v5, v5, v4')
    A('v_add_u32 v5, 4096, v5')
    A(f'v_mul_u32_u24 v7, {KL_CH}, v3')
    A('v_add_u32 v7, v7, v4')
    A(f'v_add_u32 v7, {L_KL}, v7')
    for it in range(2):
        b = 16 + 24*it
        A(f'ds_read_b128 {v(b,4)}, v5 offset:{2048*it}')
        A(f'ds_read_b64 {v(b+4,2)}, v5 offset:{2048*it+16}')
    for it in range(2):
        b = 16 + 24*it
        A(f's_waitcnt lgkmcnt({2 if it == 0 else 4})')
        for k in range(4): A(f'v_alignbit_b32 {v(b+8+k)}, {v(b+k+1)}, {v(b+k)}, 16')
        for k in range(4): A(f'v_mov_b32 {v(b+12+k)}, {v(b+k+1)}')
        for k in range(4): A(f'v_alignbit_b32 {v(b+16+k)}, {v(b+k+2)}, {v(b+k+1)}, 16')
        A(f'ds_write_b128 v7, {v(b,4)} offset:{2048*it}')
        A(f'ds_write_b128 v7, {v(b+8,4)} offset:{2048*it + KL_COPY}')
        A(f'ds_write_b128 v7, {v(b+12,4)} offset:{2048*it + 2*KL_COPY}')
        A(f'ds_write_b128 v7, {v(b+16,4)} offset:{2048*it + 3*KL_COPY}')
    A('v_mov_b32 v64, 0\nv_mov_b32 v65, 0\nv_mov_b32 v66, 0\nv_mov_b32 v67, 0')
    A('v_lshrrev_b32 v9, 2, v0')
    A(f'v_mul_u32_u24 v9, {KL_COPY}, v9')
    A('v_and_b32 v10, 3, v0')
    A('v_lshlrev_b32 v10, 4, v10')
    A('v_add_u32 v9, v9, v10')
    A(f'v_add_u32 v9, {L_KL + 4096}, v9')
    A('v_cmp_gt_u32 vcc, 32, v0')
    A('s_and_saveexec_b64 s[56:57], vcc')
    lz = A.newlabel('kg_z')
    A(f's_cbranch_execz {lz}')
    A('ds_write_b128 v9, v[64:67]')
    A.label(lz)
    A('s_mov_b64 exec, s[56:57]')
    stamp(A, 'copies')
```

```python
from core import *
import core
from pha import arrive, poll

def w1_dma_setup(A):
    A(f's_mov_b32 s60, s{S_W1}')
    A(f's_mov_b32 s61, s{S_W1+1}')
    A(f's_mov_b32 s62, {512*3584}')
    A('s_mov_b32 s63, 0x20000')
    A(f's_mul_i32 s64, s{S_JM}, 224')
    for q in range(7):
        A(f'v_add_u32 v62, {64*q}, v2')
        A('v_mul_u32_u24 v63, 4682, v62')
        A('v_lshrrev_b32 v63, 16, v63')
        A(f'v_mul_u32_u24 {v(160+q)}, 14, v63')
        A(f'v_sub_u32 v62, v62, {v(160+q)}')
        A('v_mul_u32_u24 v63, 3584, v63')
        A('v_lshlrev_b32 v62, 4, v62')
        A(f'v_add3_u32 {v(160+q)}, v62, v63, s64')
    A(f's_mul_i32 s65, s{S_WV}, {4*114688}')
    A(f's_mul_i32 s68, s{S_WV}, {28*1024}')

def phase_b(A):
    A.comment('================ phase B ================')
    poll(A, 'dbg')
    stamp(A, 'bar1')
    Q = Queue(A, 'vmcnt', 63)
    A(f's_lshr_b32 s53, s{S_J}, 2')
    A('s_lshl_b32 s53, s53, 15')
    A(f's_and_b32 s54, s{S_J}, 3')
    A('s_lshl_b32 s54, s54, 5')
    A('s_add_u32 s53, s53, s54')
    A(f's_add_u32 s53, s53, {WS_XT}')
    A('v_lshlrev_b32 v3, 7, v0')
    A('v_add_u32 v3, s53, v3')
    A('v_lshlrev_b32 v4, 5, v0')
    A(f'v_add_u32 v4, {WS_ST}, v4')
    Q.issue('st', f'global_load_dwordx4 v[24:27], v4, {s(S_WS,2)} {core.LDSC}')
    Q.issue('st', f'global_load_dwordx4 v[28:31], v4, {s(S_WS,2)} offset:16 {core.LDSC}')
    Q.issue('x', f'global_load_dwordx4 v[16:19], v3, {s(S_WS,2)} {core.LDSC}')
    Q.issue('x', f'global_load_dwordx4 v[20:23], v3, {s(S_WS,2)} offset:16 {core.LDSC}')
    w1_dma_setup(A)
    A('s_mov_b64 s[70:71], exec')
    A(f's_mul_i32 s64, s{S_JM}, 224')
    A('v_add_u32 v63, s64, v6')
    A(f's_mov_b32 m0, {L_B1}')
    A('s_mov_b64 exec, 0x3fff')
    Q.issue('b1', f'global_load_lds_dwordx4 v63, {s(S_B1,2)}')
    A('s_mov_b64 exec, s[70:71]')
    A(f's_lshr_b32 s53, s{S_WV}, 1')
    A(f's_and_b32 s54, s{S_WV}, 1')
    A('v_and_b32 v7, 15, v2')
    A('v_lshrrev_b32 v8, 4, v2')
    A('v_and_b32 v9, 3, v7')
    A('v_sub_u32 v9, 3, v9')
    A(f'v_mul_u32_u24 v9, {KL_COPY}, v9')
    A('v_lshrrev_b32 v10, 2, v7')
    A('v_lshlrev_b32 v10, 3, v10')
    A('v_sub_u32 v9, v9, v10')
    A('v_lshrrev_b32 v10, 1, v8')
    A('v_lshlrev_b32 v11, 5, v10')
    A('v_sub_u32 v9, v9, v11')
    A('v_and_b32 v11, 1, v8')
    A('v_lshlrev_b32 v12, 4, v11')
    A('v_add_u32 v9, v9, v12')
    A(f's_mul_i32 s55, s53, {KL_CH}')
    A('s_lshl_b32 s56, s54, 9')
    A('s_sub_u32 s55, s55, s56')
    A(f's_add_u32 s55, s55, {L_KL + 4088 - 3520}')
    A('v_add_u32 v60, s55, v9')
    A(f'v_mul_u32_u24 v11, {UT_Q}, v11')
    A('v_sub_u32 v12, v7, v10')
    A('v_add_u32 v12, 2, v12')
    A('v_lshlrev_b32 v12, 4, v12')
    A(f's_mul_i32 s55, s53, {UT_CH}')
    A(f's_add_u32 s55, s55, {L_UT}')
    A('v_add3_u32 v61, v11, v12, s55')
    A('v_and_b32 v9, 1, v0')
    A(f'v_mul_u32_u24 v9, {UT_Q}, v9')
    A('v_lshrrev_b32 v10, 1, v0')
    A('v_lshlrev_b32 v10, 4, v10')
    A(f'v_add3_u32 v9, v9, v10, 0')
    A(f'v_add_u32 v9, {L_UT + 256}, v9')
    A('s_mov_b32 s58, 0xffff0000')
    Q.wait('st')
    for m in range(4):
        A(f'v_lshlrev_b32 {v(40+2*m)}, 16, {v(24+2*m)}')
        A(f'v_lshlrev_b32 {v(41+2*m)}, 16, {v(25+2*m)}')
        A(f'v_and_b32 {v(48+2*m)}, s58, {v(24+2*m)}')
        A(f'v_and_b32 {v(49+2*m)}, s58, {v(25+2*m)}')
    for k in range(8): A(f'v_rcp_f32 {v(48+k)}, {v(48+k)}')
    Q.wait('x')
    stamp(A, 'xpc')
    for ch in range(2):
        for m in range(4):
            x = 16 + 4*ch + m; t = 64 + 8*ch + 2*m
            A(f'v_lshlrev_b32 {v(t)}, 16, {v(x)}')
            A(f'v_and_b32 {v(t+1)}, s58, {v(x)}')
    for ch in range(2):
        for m in range(4):
            t = 64 + 8*ch + 2*m
            A(f'v_pk_add_f32 {v(t,2)}, {v(t,2)}, {v(40+2*m,2)} neg_lo:[0,1] neg_hi:[0,1]')
    for ch in range(2):
        for m in range(4):
            t = 64 + 8*ch + 2*m
            A(f'v_cvt_pk_bf16_f32 {v(32+4*ch+m)}, {v(t)}, {v(t+1)}')
    for ch in range(2):
        for m in range(4):
            t = 64 + 8*ch + 2*m
            A(f'v_lshlrev_b32 {v(t)}, 16, {v(32+4*ch+m)}')
            A(f'v_and_b32 {v(t+1)}, s58, {v(32+4*ch+m)}')
    for ch in range(2):
        for m in range(4):
            t = 64 + 8*ch + 2*m
            A(f'v_pk_mul_f32 {v(t,2)}, {v(t,2)}, {v(48+2*m,2)}')
    for ch in range(2):
        for m in range(4):
            t = 64 + 8*ch + 2*m
            A(f'v_cvt_pk_bf16_f32 {v(32+4*ch+m)}, {v(t)}, {v(t+1)}')
    A('ds_write_b128 v9, v[32:35]')
    A(f'ds_write_b128 v9, v[36:39] offset:{UT_CH}')
    ACC = 128
    for i in range(32): A(f'v_mov_b32 {v(ACC+i)}, 0')
    A('s_waitcnt lgkmcnt(0)')
    A('s_barrier')
    stamp(A, 'norm')
    def Areg(g, i): return a((g*8 + i)*4, 4)
    def Breg(tau, i):
        if tau < 4: return a(128 + (tau*8 + i)*4, 4)
        return v(64 + (tau & 1)*32 + 4*i, 4)
    def Aread(g, i):
        o = 3520 - 512*(2*g) - 64*i
        r = (g*8 + i)*4
        return [f'ds_read_b64 {a(r,2)}, v60 offset:{o}', f'ds_read_b64 {a(r+2,2)}, v60 offset:{o+8}']
    def Bread(tau, i): return [f'ds_read_b128 {Breg(tau,i)}, v61 offset:{256*tau - 32*i + 224}']
    seq = []
    for tau in range(8):
        for i in range(8):
            seq.append((0, tau, i))
            if tau <= 5: seq.append((1, tau, i))
    p1 = len(seq)
    for tau in range(4):
        for i in range(8):
            seq.append((2, tau, i))
            if tau <= 1: seq.append((3, tau, i))
    reads = []
    last_use = {}
    for n, (g, tau, i) in enumerate(seq): last_use[('B', tau, i)] = n
    def add(tag, texts, earliest=-1):
        for t in texts: reads.append((tag, t, earliest))
    for i in range(8):
        add(('A',0,i), Aread(0,i)); add(('B',0,i), Bread(0,i)); add(('A',1,i), Aread(1,i))
    extraA = [(g, i) for g in (2, 3) for i in range(8)]
    for tau in range(1, 8):
        for i in range(8):
            e = -1
            if tau >= 6:
                e = max(n for n, (g, t, ii) in enumerate(seq[:p1]) if t == tau-2 and ii == i)
            add(('B',tau,i), Bread(tau,i), e)
            if extraA and (i % 3 == 0) and tau >= 1:
                g, ii = extraA.pop(0); add(('A',g,ii), Aread(g,ii))
    assert not extraA
    L = Queue(A, 'lgkmcnt', 15)
    w1n = [0]
    ri = 0
    def pump(n_mfma_done, k):
        nonlocal ri
        c = 0
        while ri < len(reads) and c < k and reads[ri][2] <= n_mfma_done:
            L.issue(reads[ri][0], reads[ri][1]); ri += 1; c += 1
    pump(-1, 12)
    M = 'v_mfma_f32_16x16x32_bf16'
    issued = lambda tag: any(t == tag for t in L.ops)
    for n, (g, tau, i) in enumerate(seq):
        if n == p1:
            assert ri == len(reads)
            L.drain()
            L.ops = [('A',gg,ii) for gg in range(4) for ii in range(8)] + [('B',tt,ii) for tt in range(8) for ii in range(8)]
            L.done = len(L.ops)
            A('s_barrier')
        need = [('A',g,i), ('B',tau,i)]
        for tag in need:
            while any(r[0] == tag for r in reads[ri:]):
                before = ri
                pump(n-1, 1)
                assert ri > before, (n, tag)
        L.wait_tags(need)
        tile = 2*g + tau
        A(f'{M} {v(ACC+4*tile,4)}, {Areg(g,i)}, {Breg(tau,i)}, {v(ACC+4*tile,4)}')
        pump(n, 3 if n < 24 else 1)
        if n >= 16 and (n - 16) % 5 == 0 and w1n[0] < 28:
            k = w1n[0]; w1n[0] += 1
            A('s_mov_b32 m0, s68')
            A('s_add_u32 s68, s68, 1024')
            Q.issue('w1', f'buffer_load_dwordx4 {v(160 + k % 7)}, s[60:63], s65 offen lds')
            if k % 7 == 6: A('s_add_u32 s65, s65, 114688')
    assert ri == len(reads)
    assert w1n[0] == 28, w1n
    stamp(A, 'conv')
    A(f'v_mul_u32_u24 v10, {P_G}, v8')
    A('v_lshlrev_b32 v11, 4, v7')
    A(f's_mul_i32 s55, s{S_WV}, {P_REG}')
    A(f's_add_u32 s55, s55, {L_P}')
    A('v_add3_u32 v10, v10, v11, s55')
    A(f's_mul_i32 s56, s54, {P_TILE}')
    A('v_add_u32 v11, s56, v10')
    A(f's_mul_i32 s56, s54, {7*P_TILE}')
    A(f's_sub_u32 s56, {7*P_TILE}, s56')
    A('v_add_u32 v10, s56, v10')
    A('s_cmp_eq_u32 s54, 0')
    A('s_cselect_b32 s57, 1.0, 0')
    A('s_nop 4')
    for k in range(4): A(f'v_mul_f32 {v(ACC+28+k)}, s57, {v(ACC+28+k)}')
    for t in range(7): A(f'ds_write_b128 v11, {v(ACC+4*t,4)} offset:{t*P_TILE}')
    A(f'ds_write_b128 v10, {v(ACC+28,4)}')
    A('v_lshrrev_b32 v10, 5, v0')
    A(f'v_mul_u32_u24 v10, {P_TILE}, v10')
    A('v_and_b32 v11, 1, v0')
    A(f'v_mul_u32_u24 v11, {2*P_G}, v11')
    A('v_bfe_u32 v12, v0, 1, 4')
    A('v_lshlrev_b32 v12, 4, v12')
    A('v_add3_u32 v10, v10, v11, v12')
    A(f'v_add_u32 v10, {L_P}, v10')
    A(f's_lshl_b32 s55, s{S_J}, 13')
    A(f's_add_u32 s55, s55, {WS_HT}')
    A('v_lshlrev_b32 v11, 4, v0')
    A('v_add_u32 v11, s55, v11')
    A('v_add_u32 v12, 4096, v11')
    A(f's_lshl_b32 s66, s{S_DP}, 16')
    A(f's_and_b32 s67, s{S_DP}, 0xffff0000')
    A('s_waitcnt lgkmcnt(0)')
    A('s_barrier')
    for ch in range(2):
        for par in range(2):
            for hf in range(2):
                A(f'ds_read_b128 {v(64+16*ch+8*par+4*hf,4)}, v10 offset:{(2*ch+par)*P_REG + hf*P_G}')
    for ch in range(2):
        A(f's_waitcnt lgkmcnt({4 if ch == 0 else 0})')
        D = 's66' if ch == 0 else 's67'
        y = 64 + 16*ch
        for m in range(4):
            A(f'v_pk_add_f32 {v(y+2*m,2)}, {v(y+2*m,2)}, {v(y+8+2*m,2)}')
        for m in range(4):
            u = 32 + 4*ch + m; t = y + 8 + 2*m
            A(f'v_lshlrev_b32 {v(t)}, 16, {v(u)}')
            A(f'v_and_b32 {v(t+1)}, s58, {v(u)}')
        for m in range(4):
            A(f'v_cvt_pk_bf16_f32 {v(100+m)}, {v(y+2*m)}, {v(y+2*m+1)}')
        for m in range(4):
            t = y + 8 + 2*m
            A(f'v_mul_f32 {v(t)}, {D}, {v(t)}')
            A(f'v_mul_f32 {v(t+1)}, {D}, {v(t+1)}')
        for m in range(4):
            A(f'v_lshlrev_b32 {v(y+2*m)}, 16, {v(100+m)}')
            A(f'v_and_b32 {v(y+2*m+1)}, s58, {v(100+m)}')
        for m in range(4):
            t = y + 8 + 2*m
            A(f'v_cvt_pk_bf16_f32 {v(104+m)}, {v(t)}, {v(t+1)}')
        for m in range(4):
            t = y + 8 + 2*m
            A(f'v_lshlrev_b32 {v(t)}, 16, {v(104+m)}')
            A(f'v_and_b32 {v(t+1)}, s58, {v(104+m)}')
        for m in range(4):
            A(f'v_pk_add_f32 {v(y+2*m,2)}, {v(y+2*m,2)}, {v(y+8+2*m,2)}')
        for m in range(4):
            A(f'v_cvt_pk_bf16_f32 {v(100+m)}, {v(y+2*m)}, {v(y+2*m+1)}')
        for m in range(4):
            x = 16 + 4*ch + m; t = y + 8 + 2*m
            A(f'v_lshlrev_b32 {v(t)}, 16, {v(x)}')
            A(f'v_and_b32 {v(t+1)}, s58, {v(x)}')
            A(f'v_lshlrev_b32 {v(y+2*m)}, 16, {v(100+m)}')
            A(f'v_and_b32 {v(y+2*m+1)}, s58, {v(100+m)}')
        for m in range(4):
            A(f'v_pk_add_f32 {v(y+2*m,2)}, {v(y+2*m,2)}, {v(y+8+2*m,2)}')
        for m in range(4):
            A(f'v_cvt_pk_bf16_f32 {v(108+4*ch+m)}, {v(y+2*m)}, {v(y+2*m+1)}')
        A(f'global_store_dwordx4 {v(11+ch)}, {v(108+4*ch,4)}, {s(S_WS,2)} sc1')
    stamp(A, 'cepi')
    A('s_waitcnt vmcnt(0)')
    A('s_barrier')
    arrive(A, 'b2', None)
    import phc
    phc.w2_setup(A)
    phc.w2_loads(A, 0, 7)
    stamp(A, 'arr2')
```

```python
from core import *
import core
from pha import arrive, poll

NSL = 5
G2PRE = 4
def w1_convert(A):
    A.comment('---- W1 natural -> fragment-major (in place) + column sums')
    A('v_lshrrev_b32 v3, 2, v2')
    A('v_mul_u32_u24 v3, 224, v3')
    A('v_and_b32 v4, 3, v2')
    A('v_lshlrev_b32 v4, 3, v4')
    A(f's_mul_i32 s53, s{S_WV}, {4*7168}')
    A('v_add3_u32 v3, v3, v4, s53')
    A('v_add_u32 v4, s53, v6')
    A('s_mov_b32 s58, 0x3f803f80')
    for t in range(7): A(f'v_mov_b32 {v(8+t)}, 0')
    A('s_mov_b32 s54, 0')
    lp = A.newlabel('w1c')
    A.label(lp)
    for t in range(7):
        A(f'ds_read_b64_tr_b16 {v(32+4*t,2)}, v3 offset:{32*t}')
        A(f'ds_read_b64_tr_b16 {v(34+4*t,2)}, v3 offset:{32*t+3584}')
    A('s_waitcnt lgkmcnt(0)')
    for k in range(4):
        for t in range(7): A(f'v_dot2c_f32_bf16 {v(8+t)}, s58, {v(32+4*t+k)}')
    for t in range(7):
        A(f'ds_write_b128 v4, {v(32+4*t,4)} offset:{1024*t}')
    A('v_add_u32 v3, 7168, v3')
    A('v_add_u32 v4, 7168, v4')
    A('s_add_u32 s54, s54, 1')
    A('s_cmp_lt_u32 s54, 4')
    A(f's_cbranch_scc1 {lp}')
    A('v_and_b32 v3, 15, v2')
    A('v_lshlrev_b32 v3, 2, v3')
    A(f'v_add_u32 v3, {L_CS}, v3')
    for t in range(7): A(f'ds_add_f32 v3, {v(8+t)} offset:{64*t}')
    A('s_waitcnt lgkmcnt(0)')

def w2_setup(A):
    A(f's_and_b32 s65, s{S_JM}, 7')
    A('s_mul_i32 s53, s65, 224')
    A(f's_mul_i32 s54, s{S_WV}, 14')
    A('s_add_u32 s53, s53, s54')
    A('s_lshl_b32 s53, s53, 10')
    A(f's_add_u32 s53, s53, {WS_W2F}')
    for td in range(4):
        A(f's_add_u32 s54, s53, {td*56*1024}')
        A(f'v_add_u32 {v(120+td)}, s54, v6')

def w2_loads(A, i0, i1, Q=None):
    for i in range(i0, i1):
        for td in range(4):
            t = f'global_load_dwordx4 {a((i*4+td)*4,4)}, {v(120+td)}, {s(S_WS,2)} offset:{(i%4)*1024} {core.LDSC}'
            if Q: Q.issue('w2', t)
            else: A(t)
            if i % 4 == 3: A(f'v_add_u32 {v(120+td)}, 4096, {v(120+td)}')

def phase_c(A):
    A.comment('================ phase C ================')
    w1_convert(A)
    stamp(A, 'cvt')
    A(f's_add_u32 s60, s{S_WS}, {WS_HT}')
    A(f's_addc_u32 s61, s{S_WS+1}, 0')
    A(f's_mov_b32 s62, {512*4096}')
    A('s_mov_b32 s63, 0x20000')
    A('v_lshrrev_b32 v3, 2, v2')
    A('v_lshlrev_b32 v4, 12, v3')
    A('v_bfe_u32 v5, v2, 4, 1')
    A('v_lshlrev_b32 v5, 1, v5')
    A('v_and_b32 v7, 3, v2')
    A('v_xor_b32 v8, v7, v5')
    A('v_lshlrev_b32 v8, 4, v8')
    A(f's_lshl_b32 s53, s{S_R}, 8')
    A(f's_lshl_b32 s54, s{S_WV}, 6')
    A('s_add_u32 s53, s53, s54')
    A('v_add3_u32 v12, v4, v8, s53')
    A(f's_mul_i32 s54, s{S_WV}, 10240')
    A(f's_add_u32 s64, s54, {L_HR}')
    A('v_lshlrev_b32 v4, 6, v3')
    A('v_and_b32 v8, 1, v7')
    A('v_lshlrev_b32 v8, 3, v8')
    A('v_add3_u32 v4, v4, v8, s64')
    A('v_lshrrev_b32 v8, 1, v7')
    for rt in range(2):
        A(f'v_add_u32 v9, {2*rt}, v8')
        A('v_xor_b32 v9, v9, v5')
        A(f'v_lshl_add_u32 {v(13+rt)}, v9, 4, v4')
    A(f's_and_b32 s65, s{S_JM}, 7')
    A(f's_lshr_b32 s66, s{S_JM}, 3')
    A(f's_lshl_b32 s53, s{S_R}, 1')
    A('s_add_u32 s66, s66, s53')
    A('v_add_u32 v10, 57344, v6')
    ACC = 64
    for i in range(56): A(f'v_mov_b32 {v(ACC+i)}, 0')
    for i in range(4): A(f'v_mov_b32 {v(60+i)}, 0')
    A('s_mov_b32 s59, 0x3f803f80')
    poll(A, 'b2')
    stamp(A, 'bar2')
    Q = Queue(A, 'vmcnt', 63)
    L = Queue(A, 'lgkmcnt', 15)
    def hdma(sidx):
        for blk in range(2):
            A(f's_add_u32 m0, s64, {(sidx % NSL)*2048 + blk*1024}')
            A(f's_mov_b32 s67, {sidx*131072 + blk*65536}')
            Q.issue(('H', sidx), f'buffer_load_dwordx4 v12, s[60:63], s67 offen {core.LDSC} lds')
    for sidx in range(NSL): hdma(sidx)
    def acc(t, rt): return ACC + (t*2 + rt)*4
    def wf(t): return 32 + 4*t
    def hf(buf, rt): return 16 + 8*buf + 4*rt
    def wread(t, sidx):
        base = 6 if sidx < 8 else 10
        L.issue(('W', t, sidx), f'ds_read_b128 {v(wf(t),4)}, {v(base)} offset:{(sidx % 8)*7168 + t*1024}')
    def hread(sidx):
        for rt in range(2):
            r = hf(sidx & 1, rt); o = (sidx % NSL)*2048
            L.issue(('Hf', sidx), f'ds_read_b64_tr_b16 {v(r,2)}, {v(13+rt)} offset:{o}')
            L.issue(('Hf', sidx), f'ds_read_b64_tr_b16 {v(r+2,2)}, {v(13+rt)} offset:{o+1024}')
    M = 'v_mfma_f32_16x16x32_bf16'
    Q.wait_tags([('H', 0)])
    hread(0)
    for t in range(7): wread(t, 0)
    for sidx in range(16):
        if sidx < 15:
            Q.wait_tags([('H', sidx+1)])
            hread(sidx+1)
        for t in range(7):
            L.wait_tags([('W', t, sidx), ('Hf', sidx)])
            for rt in range(2):
                A(f'{M} {v(acc(t,rt),4)}, {v(wf(t),4)}, {v(hf(sidx&1,rt),4)}, {v(acc(t,rt),4)}')
            if sidx < 15: wread(t, sidx+1)
            if t == 0 and sidx + NSL < 16: hdma(sidx+NSL)
        for k in range(4):
            for rt in range(2):
                if 'g1nostat' in core.DBG and sidx: continue
                h = hf(sidx & 1, rt) + k
                A(f'v_dot2c_f32_bf16 {v(60+2*rt)}, s59, {v(h)}')
                A(f'v_dot2c_f32_bf16 {v(61+2*rt)}, {v(h)}, {v(h)}')
    stamp(A, 'g1main')
    w2_loads(A, 7, 14)
    A('s_nop 2')
    for i in range(4): A(f'v_mov_b32 {v(12+i)}, {v(60+i)}')
    A('s_nop 1')
    for i in range(4): A(f'v_permlane16_swap_b32 {v(12+i)}, {v(60+i)}')
    A('s_nop 1')
    for i in range(4): A(f'v_add_f32 {v(60+i)}, {v(60+i)}, {v(12+i)}')
    for i in range(4): A(f'v_mov_b32 {v(12+i)}, {v(60+i)}')
    A('s_nop 1')
    for i in range(4): A(f'v_permlane32_swap_b32 {v(12+i)}, {v(60+i)}')
    A('s_nop 1')
    for i in range(4): A(f'v_add_f32 {v(60+i)}, {v(60+i)}, {v(12+i)}')
    inv512 = '0x3b000000'
    RM = [16, 18]
    for rt in range(2):
        sm, sq, r, mr = 60+2*rt, 61+2*rt, RM[rt], RM[rt]+1
        A(f'v_mul_f32 {v(sm)}, {inv512}, {v(sm)}')
        A(f'v_mul_f32 {v(sq)}, {inv512}, {v(sq)}')
        A(f'v_fma_f32 {v(sq)}, -{v(sm)}, {v(sm)}, {v(sq)}')
        A(f'v_max_f32 {v(sq)}, 0, {v(sq)}')
        A(f'v_cvt_pk_bf16_f32 {v(mr)}, {v(sm)}, {v(sq)}')
        A(f'v_and_b32 {v(r)}, 0xffff0000, {v(mr)}')
        A(f'v_lshlrev_b32 {v(mr)}, 16, {v(mr)}')
        A(f'v_add_f32 {v(r)}, 0x3727c5ac, {v(r)}')
        A(f'v_cvt_pk_bf16_f32 {v(r)}, {v(r)}, {v(r)}')
        A(f'v_lshlrev_b32 {v(r)}, 16, {v(r)}')
        A(f'v_sqrt_f32 {v(r)}, {v(r)}')
        A('s_nop 0')
        A(f'v_cvt_pk_bf16_f32 {v(r)}, {v(r)}, {v(r)}')
        A(f'v_lshlrev_b32 {v(r)}, 16, {v(r)}')
        A(f'v_rcp_f32 {v(r)}, {v(r)}')
        A('s_nop 0')
        A(f'v_mul_f32 {v(mr)}, {v(mr)}, {v(r)}')
    A('v_lshrrev_b32 v11, 4, v2')
    A('v_lshlrev_b32 v12, 4, v11')
    A(f'v_add_u32 v12, {L_CS}, v12')
    A('v_lshlrev_b32 v13, 3, v11')
    A(f'v_add_u32 v13, {L_B1}, v13')
    CS = 128; BB = 160; BU = 176
    for t in range(7):
        A(f'ds_read_b128 {v(CS+4*t,4)}, v12 offset:{64*t}')
        A(f'ds_read_b64 {v(BB+2*t,2)}, v13 offset:{32*t}')
    A('v_mov_b32 v20, 0xbdd2d3e8\nv_mov_b32 v21, 0xbdd2d3e8\nv_mov_b32 v22, 0xc0135761\nv_mov_b32 v23, 0xc0135761')
    A('v_mov_b32 v24, 1.0\nv_mov_b32 v25, 1.0')
    A('s_mov_b32 s58, 0xffff0000')
    A(f's_lshl_b32 s53, s{S_R}, 3')
    A(f's_lshl_b32 s54, s{S_WV}, 1')
    A('s_add_u32 s53, s53, s54')
    A('s_mul_i32 s53, s53, 57344')
    A(f's_mul_i32 s54, s{S_JM}, 3584')
    A('s_add_u32 s53, s53, s54')
    A(f's_add_u32 s53, s53, {WS_HID}')
    A('v_add_u32 v14, s53, v6')
    A('v_add_u32 v15, 57344, v14')
    A('v_lshlrev_b32 v26, 3, v2')
    A('s_add_u32 s53, s53, 3072')
    A('v_add_u32 v26, s53, v26')
    A('v_add_u32 v27, 57344, v26')
    A('s_waitcnt lgkmcnt(0)')
    for t in range(7):
        for k in range(2):
            A(f'v_lshlrev_b32 {v(BU+4*t+2*k)}, 16, {v(BB+2*t+k)}')
            A(f'v_and_b32 {v(BU+4*t+2*k+1)}, s58, {v(BB+2*t+k)}')
    for t in range(7):
        for rt in range(2):
            a0 = acc(t, rt)
            T = 208 + 16*rt
            out = 240 + 4*rt + 2*(t & 1)
            for k in range(2):
                z = a0 + 2*k; tt = T + 2*k; e = T + 4 + 2*k; x = T + 8 + 2*k
                A(f'v_pk_mul_f32 {v(tt,2)}, {v(CS+4*t+2*k,2)}, {v(RM[rt],2)} op_sel:[0,1] op_sel_hi:[1,1]')
                A(f'v_pk_fma_f32 {v(z,2)}, {v(z,2)}, {v(RM[rt],2)}, {v(tt,2)} op_sel:[0,0,0] op_sel_hi:[1,0,1] neg_lo:[0,0,1] neg_hi:[0,0,1]')
                A(f'v_cvt_pk_bf16_f32 {v(tt)}, {v(z)}, {v(z+1)}')
                A(f'v_lshlrev_b32 {v(z)}, 16, {v(tt)}')
                A(f'v_and_b32 {v(z+1)}, s58, {v(tt)}')
                A(f'v_pk_add_f32 {v(z,2)}, {v(z,2)}, {v(BU+4*t+2*k,2)}')
                A(f'v_cvt_pk_bf16_f32 {v(tt)}, {v(z)}, {v(z+1)}')
                A(f'v_lshlrev_b32 {v(x)}, 16, {v(tt)}')
                A(f'v_and_b32 {v(x+1)}, s58, {v(tt)}')
                A(f'v_pk_mul_f32 {v(tt,2)}, {v(x,2)}, {v(x,2)}')
                A(f'v_pk_fma_f32 {v(tt,2)}, {v(tt,2)}, v[20:21], v[22:23]')
                A(f'v_pk_mul_f32 {v(tt,2)}, {v(tt,2)}, {v(x,2)}')
                A(f'v_exp_f32 {v(e)}, {v(tt)}')
                A(f'v_exp_f32 {v(e+1)}, {v(tt+1)}')
                A('s_nop 0')
                A(f'v_pk_add_f32 {v(e,2)}, {v(e,2)}, v[24:25]')
                A(f'v_rcp_f32 {v(e)}, {v(e)}')
                A(f'v_rcp_f32 {v(e+1)}, {v(e+1)}')
                A('s_nop 0')
                A(f'v_pk_mul_f32 {v(x,2)}, {v(x,2)}, {v(e,2)}')
                A(f'v_cvt_pk_bf16_f32 {v(out+k)}, {v(x)}, {v(x+1)}')
            if t == 6:
                A(f'global_store_dwordx2 {v(26+rt)}, {v(out,2)}, {s(S_WS,2)} sc1')
            elif t & 1:
                A(f'global_store_dwordx4 {v(14+rt)}, {v(240+4*rt,4)}, {s(S_WS,2)} offset:{(t>>1)*1024} sc1')
    stamp(A, 'gelu')
    A('s_waitcnt vmcnt(0)')
    A('s_barrier')
    arrive(A, 'b3', None)
    stamp(A, 'arr3')
    A('v_lshrrev_b32 v8, 3, v2')
    A('v_lshlrev_b32 v8, 12, v8')
    A('v_and_b32 v9, 7, v2')
    A('v_lshlrev_b32 v9, 4, v9')
    A('s_lshl_b32 s53, s66, 7')
    A('v_add3_u32 v28, v8, v9, s53')
    A(f's_lshl_b32 s53, s65, 18')
    A(f's_lshl_b32 s54, s{S_WV}, 16')
    A('s_add_u32 s53, s53, s54')
    A(f's_lshl_b32 s54, s{S_WV}, 11')
    A(f's_add_u32 m0, s54, {L_HT2}')
    A('s_add_u32 s67, s53, 32768')
    A(f'buffer_load_dwordx4 v28, s[60:63], s53 offen {core.LDSC} lds')
    A(f's_add_u32 m0, m0, 1024')
    A('s_nop 0')
    A(f'buffer_load_dwordx4 v28, s[60:63], s67 offen {core.LDSC} lds')


def phase_d(A):
    A.comment('================ phase D ================')
    A('s_lshl_b32 s53, s66, 2')
    A('s_mul_i32 s53, s53, 57344')
    A(f's_mul_i32 s54, s{S_WV}, {4*3584}')
    A('s_add_u32 s53, s53, s54')
    A(f's_add_u32 s53, s53, {WS_HID}')
    A('v_lshlrev_b32 v3, 3, v2')
    for lt in range(4):
        A(f's_add_u32 s54, s53, {lt*57344}')
        A(f'v_add_u32 {v(8+lt)}, s54, v6')
        A(f's_add_u32 s54, s54, 3072')
        A(f'v_add_u32 {v(12+lt)}, s54, v3')
    A('v_lshrrev_b32 v4, 4, v2')
    A('v_lshlrev_b32 v5, 3, v4')
    A('s_lshl_b32 s54, s65, 7')
    A('v_add_u32 v5, s54, v5')
    for td in range(4):
        A(f'global_load_dwordx2 {v(16+2*td,2)}, v5, {s(S_B2,2)} offset:{32*td}')
    ACC = 192
    for i in range(64): A(f'v_mov_b32 {v(ACC+i)}, 0')
    poll(A, 'b3')
    stamp(A, 'bar3')
    Q = Queue(A, 'vmcnt', 63)
    NST = 10
    RB = 32
    def fr(i, lt): return RB + (i % NST)*16 + 4*lt
    def load_list(i):
        A2 = Asm(); Q2 = Queue(A2, 'vmcnt', 63)
        return None
    def load_one(i, lt):
        if 'g2noload' in core.DBG:
            Q.ops.append(('h', i)); return
        if i < 12:
            jj, m = divmod(i, 3)
            Q.issue(('h', i), f'global_load_dwordx4 {v(fr(i,lt),4)}, {v(8+lt)}, {s(S_WS,2)} offset:{m*1024} {core.LDSC}')
            if m == 2: A(f'v_add_u32 {v(8+lt)}, 3584, {v(8+lt)}')
        else:
            Q.issue(('h', i), f'global_load_dwordx2 {v(fr(i,lt),2)}, {v(12+lt)}, {s(S_WS,2)} {core.LDSC}')
            Q.issue(('h', i), f'global_load_dwordx2 {v(fr(i,lt)+2,2)}, {v(12+lt)}, {s(S_WS,2)} offset:3584 {core.LDSC}')
            if i == 12: A(f'v_add_u32 {v(12+lt)}, 7168, {v(12+lt)}')
    PRE = G2PRE
    for i in range(PRE):
        for lt in range(4): load_one(i, lt)
    def acc(td, lt): return ACC + (td*4 + lt)*4
    M = 'v_mfma_f32_16x16x32_bf16'
    for i in range(14):
        Q.wait_tags([('h', i)])
        for td in range(4):
            for lt in range(4):
                if 'g2nomfma' in core.DBG and (td or lt): continue
                A(f'{M} {v(acc(td,lt),4)}, {a((i*4+td)*4,4)}, {v(fr(i,lt),4)}, {v(acc(td,lt),4)}')
            if i + PRE < 14: load_one(i + PRE, td)
    stamp(A, 'g2main')
    A(f's_lshl_b32 s54, s{S_WV}, 12')
    A('v_add_u32 v7, s54, v6')
    A('s_nop 7')
    for lt in range(4):
        for td in range(4):
            A(f'ds_write_b128 v7, {v(acc(td,lt),4)} offset:{lt*16384 + td*1024}')
    A(f's_lshl_b32 s54, s{S_WV}, 14')
    A('v_add_u32 v7, s54, v6')
    A('v_lshrrev_b32 v24, 2, v2')
    A('v_lshlrev_b32 v24, 7, v24')
    A('v_and_b32 v25, 3, v2')
    A('v_lshlrev_b32 v25, 3, v25')
    A(f's_lshl_b32 s54, s{S_WV}, 5')
    A(f's_add_u32 s54, s54, {L_HT2}')
    A('v_add3_u32 v24, v24, v25, s54')
    A('s_waitcnt lgkmcnt(0)')
    A('s_barrier')
    for src in range(4):
        for td in range(4):
            A(f'ds_read_b128 {v(64+16*src+4*td,4)}, v7 offset:{src*4096 + td*1024}')
    for td in range(4):
        A(f'ds_read_b64_tr_b16 {v(24+0,2) if False else v(136+2*td,2)}, v24 offset:{td*2048}')
    A('s_lshl_b32 s53, s66, 2')
    A(f's_add_u32 s53, s53, s{S_WV}')
    A('s_lshl_b32 s53, s53, 14')
    A('v_and_b32 v25, 15, v2')
    A('v_lshlrev_b32 v25, 10, v25')
    A('v_add3_u32 v25, v25, v5, s53')
    A('s_mov_b32 s58, 0xffff0000')
    A('s_waitcnt lgkmcnt(0)')
    for td in range(4):
        b = 64 + 4*td
        for k in range(2):
            p = b + 2*k
            A(f'v_pk_add_f32 {v(p,2)}, {v(p,2)}, {v(p+16,2)}')
            A(f'v_pk_add_f32 {v(p+32,2)}, {v(p+32,2)}, {v(p+48,2)}')
            A(f'v_pk_add_f32 {v(p,2)}, {v(p,2)}, {v(p+32,2)}')
            t = 128 + 4*k
            A(f'v_cvt_pk_bf16_f32 {v(t)}, {v(p)}, {v(p+1)}')
            A(f'v_lshlrev_b32 {v(p)}, 16, {v(t)}')
            A(f'v_and_b32 {v(p+1)}, s58, {v(t)}')
            A(f'v_lshlrev_b32 {v(t+2)}, 16, {v(16+2*td+k)}')
            A(f'v_and_b32 {v(t+3)}, s58, {v(16+2*td+k)}')
            A(f'v_pk_add_f32 {v(p,2)}, {v(p,2)}, {v(t+2,2)}')
            A(f'v_cvt_pk_bf16_f32 {v(t)}, {v(p)}, {v(p+1)}')
            A(f'v_lshlrev_b32 {v(p)}, 16, {v(t)}')
            A(f'v_and_b32 {v(p+1)}, s58, {v(t)}')
            A(f'v_lshlrev_b32 {v(t+2)}, 16, {v(136+2*td+k)}')
            A(f'v_and_b32 {v(t+3)}, s58, {v(136+2*td+k)}')
            A(f'v_pk_add_f32 {v(p,2)}, {v(p,2)}, {v(t+2,2)}')
            if core.OFFS:
                A(f'v_add_f32 {v(p)}, {core.OFFS}, {v(p)}')
                A(f'v_add_f32 {v(p+1)}, {core.OFFS}, {v(p+1)}')
            A(f'v_cvt_pk_bf16_f32 {v(144+2*td+k)}, {v(p)}, {v(p+1)}')
        A(f'global_store_dwordx2 v25, {v(144+2*td,2)}, {s(S_OUT,2)} offset:{32*td}')
```

```python
import sys
sys.path.insert(0,'f')
import core
from core import *
args = sys.argv[1:]
out = args[0] if args else 'sequential_preLN__ssm_conv_s4d__dense_activation_gelu__prompt.s'
if 'instr' in args: core.INSTR = True
if 'plainld' in args: core.LDSC = ''
core.DBG = set(x for x in args if x.startswith('g') )
import struct
for x in args:
    if x.startswith('offs='): core.OFFS = hex(struct.unpack('<I', struct.pack('<f', float(x[5:])))[0])
STOP = 'all'
for x in args:
    if x.startswith('stop='): STOP = x[5:]
import pha, phb
REF='sequential_preLN__ssm_conv_s4d__dense_activation_gelu__prompt.s.ref'
NAME='sequential_preLN__ssm_conv_s4d__dense_activation_gelu__prompt_kernel'
A = Asm()
kernel_header(A, NAME)
lex = A.newlabel('exit')
pha.prologue(A, lex)
pha.phase_a(A)
phb.phase_b(A)
if STOP != 'b':
    import phc
    phc.phase_c(A)
    if STOP != 'c':
        phc.phase_d(A)
stamp_end(A)
A.label(lex)
A('s_endpgm')
head=[l for l in open(REF).read().split('\n') if l.startswith(';') and 'offset' in l or l.startswith('; Kernarg')]
txt='\n'.join(head)+'\n'
txt+=f'; @launch grid=(256,1,1) block=(256,1,1) lds={LDS_TOTAL}\n'
txt+='.amdgcn_target "amdgcn-amd-amdhsa--gfx950"\n.text\n'+A.text()
txt+='.section .rodata,"a"\n.p2align 6\n'+kernel_desc(NAME,512,256)
open(out,'w').write(txt)
print('written',out,len(txt),'bytes')
```
